```python
import torch

def _softmax(x, axis=-1):
    return torch.softmax(x, dim=axis)
def _gelu(x):
    return torch.nn.functional.gelu(x, approximate="tanh")
def _silu(x):
    return torch.nn.functional.silu(x)
def _sigmoid(x):
    return torch.sigmoid(x)
def _layernorm(x, axis=-1, eps=1e-5):
    m = x.mean(dim=axis, keepdim=True)
    v = x.var(dim=axis, keepdim=True, unbiased=False)
    return (x - m) / torch.sqrt(v + eps)
def _scatter_add(tgt, idx, src, axis=0):
    return tgt.clone().index_add_(axis, idx, src)
def _segment_sum(src, seg, n):
    out = torch.zeros((n,) + src.shape[1:], dtype=src.dtype)
    return out.index_add_(0, seg, src)
def _pad(x, pw):
    flat = tuple(v for pair in reversed(pw) for v in pair)
    return torch.nn.functional.pad(x, flat)

kernel_name = 'standalone__deep_cross_pnn__recsys'

def setup_inputs():

    _w = (lambda a: (lambda t: t.to(torch.bfloat16) if t.is_floating_point() else t)(torch.as_tensor(a)))
    B, F, D, V = 4096, 100, 64, min(1000, 100000)
    H = 4 * D
    return {
        "idx": _w((lambda lo, hi, *s: torch.randint(lo, hi, s))(0, V, B, F).to(torch.int64)),
        "table": _w((lambda *s: torch.randn(*s, dtype=torch.bfloat16) * 1.6)(V, D) * (D ** -0.5)),
        "w_p": _w((lambda *s: torch.randn(*s, dtype=torch.bfloat16) * 0.05)(F * F) * ((F * F) ** -0.5)),
        "w1": _w((lambda *s: torch.randn(*s, dtype=torch.bfloat16) * 1.6)(F * D, H) * ((F * D) ** -0.5)),
        "b1": _w((lambda *s: torch.randn(*s, dtype=torch.bfloat16) * 1.6)(H) * 0.01),
        "w2": _w((lambda *s: torch.randn(*s, dtype=torch.bfloat16) * 0.05)(H) * (H ** -0.5)),
        "b2": _w((lambda *s: torch.randn(*s, dtype=torch.bfloat16) * 0.05)(1) * 0.01),
    }

def reference(idx, table, w_p, w1, b1, w2, b2):
    emb = table[idx]
    B = emb.shape[0]; F = emb.shape[1]; D = emb.shape[2]
    ip = torch.einsum('bid,bjd->bij', emb, emb)
    ip = ip.reshape(B, F * F)
    logit_p = ip @ w_p
    z = emb.reshape(B, F * D)
    h = _gelu(z @ w1 + b1)
    logit_d = h @ w2 + b2
    return logit_p + logit_d
```

```python
import sys
out = []
def I(s): out.append("    " + s)
def L(s): out.append(s + ":")

HDR = open('standalone__deep_cross_pnn__recsys.s.ref').read().split('\n')
hdr = [l for l in HDR if l.startswith(';') and not l.startswith('; @launch')]
NAME = "standalone__deep_cross_pnn__recsys_kernel"

S_MT, S_NS, S_W = 3, 4, 5
P_IDX, P_TAB, P_WP, P_W1, P_B1, P_W2, P_B2, P_OUT, P_DBG, P_WS = 16,18,20,22,24,26,28,30,32,34
R_IDX, R_TAB, R_WP, R_W1, R_B1, R_W2, R_WS, R_DBG, R_OUT, R_B2 = 36,40,44,48,52,56,60,64,68,72
S_SELLO, S_SELHI = 76, 77
S_T0, S_T1, S_T2, S_T3 = 78, 79, 80, 81
S_C1, S_C2 = 82, 83
S_EX = 84
S_BOFF = 86
V_L, V_I, V_G, V_G16 = 1, 2, 3, 4
V_BADDR = 5
V_T = 6
V_D = 16
V_WQ = 32
V_BF = 32
V_BR = 144
V_M = 244
V_PA = 244
V_B1 = 248
V_W2 = 250
V_B2 = 252
A_ACC = 0
A_AF = 64
A_AD = 128
A_PI = 228
A_E = 0
A_W1R = 0

def srd(r, p, size):
    I(f"s_mov_b32 s{r}, s{p}")
    I(f"s_and_b32 s{r+1}, s{p+1}, 0xffff")
    I(f"s_mov_b32 s{r+2}, {size}")
    I(f"s_mov_b32 s{r+3}, 0x00020000")

pairs = [(t1,t2) for t1 in range(7) for t2 in range(t1,7)]
def wq(p, r): return V_WQ + p*4 + r

I("s_cmp_ge_u32 s2, 256")
I("s_cbranch_scc1 L_end")
I("s_load_dwordx16 s[16:31], s[0:1], 0")
I("s_load_dwordx4 s[32:35], s[0:1], 64")
I(f"s_lshr_b32 s{S_MT}, s2, 2")
I(f"s_and_b32 s{S_NS}, s2, 3")
I(f"v_lshrrev_b32 v{V_T}, 6, v0")
I(f"v_and_b32 v{V_L}, 63, v0")
I(f"v_readfirstlane_b32 s{S_W}, v{V_T}")
I(f"v_and_b32 v{V_I}, 15, v0")
I(f"v_bfe_u32 v{V_G}, v0, 4, 2")
I(f"v_lshlrev_b32 v{V_G16}, 4, v{V_G}")
I(f"s_mov_b32 s{S_SELLO}, 0x05040100")
I(f"s_mov_b32 s{S_SELHI}, 0x07060302")
I(f"s_mov_b32 s{S_C1}, 0xc0135761")
I(f"s_mov_b32 s{S_C2}, 0xbdd2d3e8")
I("s_waitcnt lgkmcnt(0)")
srd(R_IDX, P_IDX, 4096*400)
srd(R_TAB, P_TAB, 128000)
srd(R_WP, P_WP, 20000)
srd(R_W1, P_W1, 6400*512)
srd(R_B1, P_B1, 512)
srd(R_W2, P_W2, 512)
srd(R_B2, P_B2, 2)
srd(R_WS, P_WS, 4096*5*4)
srd(R_DBG, P_DBG, 256)
srd(R_OUT, P_OUT, 8192)

I(f"s_mul_i32 s{S_T0}, s{S_MT}, 25600")
I(f"s_mul_i32 s{S_T1}, s{S_W}, 100")
I(f"s_add_u32 s{S_T0}, s{S_T0}, s{S_T1}")
I(f"v_mul_u32_u24 v{V_T}, 400, v{V_I}")
I(f"v_add_u32 v{V_T}, s{S_T0}, v{V_T}")
for t in range(4):
    I(f"s_mov_b32 s{S_T1}, {t*6400}")
    for e in range(6):
        r = V_BR + t*26 + e*4
        I(f"buffer_load_dwordx4 v[{r}:{r+3}], v{V_T}, s[{R_IDX}:{R_IDX+3}], s{S_T1} offen offset:{e*16}")
    I(f"buffer_load_dword v{V_BR+t*26+24}, v{V_T}, s[{R_IDX}:{R_IDX+3}], s{S_T1} offen offset:96")
I(f"s_lshl_b32 s{S_T0}, s{S_MT}, 6")
I(f"s_lshl_b32 s{S_T1}, s{S_NS}, 4")
I(f"s_add_u32 s{S_T0}, s{S_T0}, s{S_T1}")
I(f"s_lshl_b32 s{S_T1}, s{S_W}, 2")
I(f"s_add_u32 s{S_T0}, s{S_T0}, s{S_T1}")
I(f"s_mul_i32 s{S_T0}, s{S_T0}, 400")
I(f"v_lshlrev_b32 v{V_T+1}, 2, v{V_I}")
I(f"v_min_u32 v{V_T+2}, 3, v{V_I}")
I(f"v_lshlrev_b32 v{V_T+2}, 2, v{V_T+2}")
for q in range(4):
    for t in range(7):
        va = V_T+1 if t < 6 else V_T+2
        I(f"buffer_load_dword a{A_PI+q*7+t}, v{va}, s[{R_IDX}:{R_IDX+3}], s{S_T0} offen offset:{q*400+t*64}")
I(f"s_and_b32 s{S_T1}, s{S_W}, 1")
I(f"s_lshl_b32 s{S_T1}, s{S_T1}, 2")
I(f"v_lshrrev_b32 v{V_T+3}, 4, v{V_L}")
I(f"v_add_u32 v{V_T+3}, s{S_T1}, v{V_T+3}")
I(f"v_and_b32 v{V_T+4}, 7, v{V_L}")
I(f"v_xor_b32 v{V_T+4}, v{V_T+4}, v{V_T+3}")
I(f"v_lshlrev_b32 v{V_T+4}, 4, v{V_T+4}")
I(f"v_lshrrev_b32 v{V_T+3}, 3, v{V_L}")
I(f"v_lshl_or_b32 v{V_T+4}, v{V_T+3}, 7, v{V_T+4}")
I(f"s_lshl_b32 s{S_T2}, s{S_W}, 10")
for q in range(32):
    I(f"s_mov_b32 m0, s{S_T2}")
    I(f"s_nop 0")
    I(f"buffer_load_dwordx4 v{V_T+4}, s[{R_TAB}:{R_TAB+3}], s{S_T2} offen lds")
    if q < 31: I(f"s_add_u32 s{S_T2}, s{S_T2}, 4096")
I("s_waitcnt vmcnt(32)")
BIG = 0x7ffffff0
I(f"v_mul_u32_u24 v{V_T+5}, 200, v{V_I}")
I(f"v_lshl_add_u32 v{V_T+5}, v{V_G}, 3, v{V_T+5}")
I(f"v_mov_b32 v{V_T+9}, {BIG}")
I(f"v_cmp_gt_u32 vcc, 4, v{V_I}")
I(f"s_nop 1")
I(f"v_cndmask_b32 v{V_T+6}, v{V_T+9}, v{V_T+5}, vcc")
I(f"v_cmp_eq_u32 vcc, 0, v{V_G}")
I(f"s_nop 1")
I(f"v_cndmask_b32 v{V_T+7}, v{V_T+9}, v{V_T+6}, vcc")
I(f"v_mul_u32_u24 v{V_T+8}, 800, v{V_G}")
I(f"v_lshl_add_u32 v{V_T+8}, v{V_I}, 1, v{V_T+8}")
I(f"v_cmp_gt_u32 vcc, 4, v{V_I}")
I(f"s_nop 1")
I(f"v_cndmask_b32 v{V_T+9}, v{V_T+9}, v{V_T+8}, vcc")
for p,(t1,t2) in enumerate(pairs):
    va = V_T+5 if t2 < 6 else (V_T+6 if t1 < 6 else V_T+7)
    I(f"s_mov_b32 s{S_T1}, {t2*3200}")
    I(f"buffer_load_dwordx2 a[{A_W1R+2*p}:{A_W1R+2*p+1}], v{va}, s[{R_WP}:{R_WP+3}], s{S_T1} offen offset:{t1*32}")
    if t1 < t2:
        va = V_T+8 if t2 < 6 else V_T+9
        I(f"s_mov_b32 s{S_T1}, {t1*3200}")
        for r in range(4):
            I(f"buffer_load_ushort v{wq(p,r)}, v{va}, s[{R_WP}:{R_WP+3}], s{S_T1} offen offset:{r*200+t2*32}")
I(f"s_lshl_b32 s{S_T1}, s{S_NS}, 7")
I(f"v_lshlrev_b32 v{V_T+5}, 3, v{V_I}")
I(f"buffer_load_dwordx2 v[{V_B1}:{V_B1+1}], v{V_T+5}, s[{R_B1}:{R_B1+3}], s{S_T1} offen")
I(f"buffer_load_dwordx2 v[{V_W2}:{V_W2+1}], v{V_T+5}, s[{R_W2}:{R_W2+3}], s{S_T1} offen")
I(f"v_mov_b32 v{V_T+6}, 0")
I(f"buffer_load_ushort v{V_B2}, v{V_T+6}, s[{R_B2}:{R_B2+3}], 0 offen")
def addr_calc(src, dst_a):
    t = V_T+10; t2 = V_T+11
    I(f"v_bfe_u32 v{t}, v{src}, 1, 3")
    I(f"v_lshlrev_b32 v{t2}, 7, v{src}")
    I(f"v_xor_b32 v{t}, v{t}, v{V_G}")
    I(f"v_lshl_or_b32 v{t}, v{t}, 4, v{t2}")
    I(f"v_accvgpr_write_b32 a{dst_a}, v{t}")
for t in range(4):
    for f in range(25):
        addr_calc(V_BR+t*26+f, A_AD + f*4 + t)
for k in range(28):
    I(f"v_accvgpr_read_b32 v{V_T+12}, a{A_PI+k}")
    addr_calc(V_T+12, A_PI+k)
I(f"v_lshlrev_b32 v{V_BADDR}, 12, v{V_G}")
I(f"v_lshl_add_u32 v{V_BADDR}, v{V_I}, 3, v{V_BADDR}")
I(f"s_lshl_b32 s{S_T1}, s{S_NS}, 7")
I(f"v_add_u32 v{V_BADDR}, s{S_T1}, v{V_BADDR}")
I(f"s_mul_i32 s{S_BOFF}, s{S_W}, {25*32768}")
def bload(f):
    rb = f % 3
    for s in range(2):
        I(f"s_add_u32 s{S_T3}, s{S_BOFF}, {f*32768 + s*16384}")
        for r in range(8):
            d = V_BR + rb*32 + (s*8+r)*2
            I(f"buffer_load_dwordx2 v[{d}:{d+1}], v{V_BADDR}, s[{R_W1}:{R_W1+3}], s{S_T3} offen offset:{r*512}")
I("s_waitcnt vmcnt(0)")
I("s_barrier")
for f in range(3): bload(f)
for p,(t1,t2) in enumerate(pairs):
    a0, a1 = V_T+10, V_T+11
    I(f"v_accvgpr_read_b32 v{a0}, a{A_W1R+2*p}")
    I(f"v_accvgpr_read_b32 v{a1}, a{A_W1R+2*p+1}")
    if t1 < t2:
        for r in range(4):
            I(f"v_lshlrev_b32 v{wq(p,r)}, 16, v{wq(p,r)}")
        I(f"v_lshlrev_b32 v{V_T+12}, 16, v{a0}")
        I(f"v_and_b32 v{V_T+13}, 0xffff0000, v{a0}")
        I(f"v_lshlrev_b32 v{V_T+14}, 16, v{a1}")
        I(f"v_and_b32 v{V_T+15}, 0xffff0000, v{a1}")
        for r in range(4):
            I(f"v_add_f32 v{wq(p,r)}, v{wq(p,r)}, v{V_T+12+r}")
    else:
        I(f"v_lshlrev_b32 v{wq(p,0)}, 16, v{a0}")
        I(f"v_and_b32 v{wq(p,1)}, 0xffff0000, v{a0}")
        I(f"v_lshlrev_b32 v{wq(p,2)}, 16, v{a1}")
        I(f"v_and_b32 v{wq(p,3)}, 0xffff0000, v{a1}")

def efrag(q, t, s): return A_E + (q%2)*56 + (t*2+s)*4
def pnn_reads(q):
    for t in range(7):
        I(f"v_accvgpr_read_b32 v{V_T+10}, a{A_PI+q*7+t}")
        I(f"v_xor_b32 v{V_T+11}, 64, v{V_T+10}")
        e0 = efrag(q,t,0); e1 = efrag(q,t,1)
        I(f"ds_read_b128 a[{e0}:{e0+3}], v{V_T+10}")
        I(f"ds_read_b128 a[{e1}:{e1+3}], v{V_T+11}")
for q in range(4): I(f"v_mov_b32 v{V_PA+q}, 0")
pnn_reads(0)
LAG = 3
for q in range(4):
    I("s_waitcnt lgkmcnt(0)")
    if q < 3: pnn_reads(q+1)
    for p in range(28 + LAG):
        if p < 28:
            t1,t2 = pairs[p]; d = V_D + (p%4)*4
            a0,b0 = efrag(q,t1,0), efrag(q,t2,0); a1,b1 = efrag(q,t1,1), efrag(q,t2,1)
            I(f"v_mfma_f32_16x16x32_bf16 v[{d}:{d+3}], a[{a0}:{a0+3}], a[{b0}:{b0+3}], 0")
            I(f"v_mfma_f32_16x16x32_bf16 v[{d}:{d+3}], a[{a1}:{a1+3}], a[{b1}:{b1+3}], v[{d}:{d+3}]")
        else:
            I("s_nop 3")
        pp = p - LAG
        if pp >= 0:
            d = V_D + (pp%4)*4
            for r in range(4):
                I(f"v_fmac_f32 v{V_PA+q}, v{d+r}, v{wq(pp,r)}")
def dpp_add(v, mod):
    I("s_nop 1")
    I(f"v_add_f32_dpp v{v}, v{v}, v{v} {mod}")
for sh in (1,2,4,8):
    for q in range(4): dpp_add(V_PA+q, f"row_shr:{sh} row_mask:0xf bank_mask:0xf bound_ctrl:0")
for q in range(4): dpp_add(V_PA+q, "row_bcast:15 row_mask:0xa bank_mask:0xf")
for q in range(4): dpp_add(V_PA+q, "row_bcast:31 row_mask:0xc bank_mask:0xf")
I(f"s_lshl_b32 s{S_T0}, s{S_MT}, 6")
I(f"s_lshl_b32 s{S_T1}, s{S_NS}, 4")
I(f"s_add_u32 s{S_T0}, s{S_T0}, s{S_T1}")
I(f"s_lshl_b32 s{S_T1}, s{S_W}, 2")
I(f"s_add_u32 s{S_T0}, s{S_T0}, s{S_T1}")
I(f"s_lshl_b32 s{S_T0}, s{S_T0}, 2")
I(f"s_add_u32 s{S_T0}, s{S_T0}, {4096*4*4}")
I(f"v_mov_b32 v{V_T+10}, 0")
I(f"s_mov_b64 s[{S_EX}:{S_EX+1}], exec")
I(f"s_mov_b32 exec_lo, 0")
I(f"s_mov_b32 exec_hi, 0x80000000")
I(f"buffer_store_dwordx4 v[{V_PA}:{V_PA+3}], v{V_T+10}, s[{R_WS}:{R_WS+3}], s{S_T0} offen sc1")
I(f"s_mov_b64 exec, s[{S_EX}:{S_EX+1}]")

def af(f, t, s): return A_AF + (f%2)*32 + (t*2+s)*4
def bf(f, s, j): return V_BF + (f%2)*32 + (s*4+j)*4
def acc(t, j): return A_ACC + (t*4+j)*4
def a_reads(f):
    r = []
    for t in range(4):
        ta = V_D + t*2
        r.append(f"v_accvgpr_read_b32 v{ta}, a{A_AD+f*4+t}")
        r.append(f"v_xor_b32 v{ta+1}, 64, v{ta}")
        e0 = af(f,t,0); e1 = af(f,t,1)
        r.append(f"ds_read_b128 a[{e0}:{e0+3}], v{ta}")
        r.append(f"ds_read_b128 a[{e1}:{e1+3}], v{ta+1}")
    return r
def perms(f):
    r = []
    rb = f % 3
    for s in range(2):
        for j in range(4):
            for m in range(4):
                lo = V_BR + rb*32 + (s*8+2*m)*2 + (j>>1)
                hi = V_BR + rb*32 + (s*8+2*m+1)*2 + (j>>1)
                sel = S_SELLO if (j&1)==0 else S_SELHI
                r.append(f"v_perm_b32 v{bf(f,s,j)+m}, v{hi}, v{lo}, s{sel}")
    return r
def bload_list(f):
    r = []
    rb = f % 3
    for s in range(2):
        r.append(f"s_add_u32 s{S_T3}, s{S_BOFF}, {f*32768 + s*16384}")
        for rr in range(8):
            d = V_BR + rb*32 + (s*8+rr)*2
            r.append(f"buffer_load_dwordx2 v[{d}:{d+1}], v{V_BADDR}, s[{R_W1}:{R_W1+3}], s{S_T3} offen offset:{rr*512}")
    return r
for k in range(64): I(f"v_accvgpr_write_b32 a{A_ACC+k}, 0")
for x in a_reads(0): I(x)
I("s_waitcnt vmcnt(33)")
for x in perms(0): I(x)
for x in bload_list(3): I(x)
I("s_waitcnt lgkmcnt(0)")
NF = 25
for f in range(NF):
    mf = []
    for s in range(2):
        for t in range(4):
            for j in range(4):
                a = af(f,t,s); b = bf(f,s,j); c = acc(t,j)
                mf.append(f"v_mfma_f32_16x16x32_bf16 a[{c}:{c+3}], a[{a}:{a+3}], v[{b}:{b+3}], a[{c}:{c+3}]")
    side = []
    if f+1 < NF:
        side += a_reads(f+1)
        nout = sum(16 for g in (f+2, f+3) if g < NF)
        side.append(f"s_waitcnt vmcnt({nout})")
        side += perms(f+1)
        if f+4 < NF: side += bload_list(f+4)
    k = 0
    for m in mf:
        I(m)
        for _ in range(2):
            if k < len(side): I(side[k]); k += 1
    while k < len(side): I(side[k]); k += 1
    if f+1 < NF: I("s_waitcnt lgkmcnt(0)")

I("s_nop 7"); I("s_nop 7")
I("s_barrier")
I(f"v_lshlrev_b32 v{V_T}, 4, v{V_L}")
I(f"s_lshl_b32 s{S_T0}, s{S_W}, 14")
I(f"v_add_u32 v{V_T+1}, s{S_T0}, v{V_T}")
for t in range(4):
    for j in range(4):
        c = acc(t,j)
        I(f"ds_write_b128 v{V_T+1}, a[{c}:{c+3}] offset:{(t*4+j)*1024}")
I("s_waitcnt lgkmcnt(0)")
I("s_barrier")
I(f"s_lshl_b32 s{S_T0}, s{S_W}, 12")
I(f"v_add_u32 v{V_T+1}, s{S_T0}, v{V_T}")
VZ = 32
for wp in range(4):
    for j in range(4):
        d = VZ + (wp*4+j)*4
        I(f"ds_read_b128 v[{d}:{d+3}], v{V_T+1} offset:{wp*16384+j*1024}")
VB, VW = 96, 100
I(f"v_lshlrev_b32 v{VB}, 16, v{V_B1}")
I(f"v_and_b32 v{VB+1}, 0xffff0000, v{V_B1}")
I(f"v_lshlrev_b32 v{VB+2}, 16, v{V_B1+1}")
I(f"v_and_b32 v{VB+3}, 0xffff0000, v{V_B1+1}")
I(f"v_lshlrev_b32 v{VW}, 16, v{V_W2}")
I(f"v_and_b32 v{VW+1}, 0xffff0000, v{V_W2}")
I(f"v_lshlrev_b32 v{VW+2}, 16, v{V_W2+1}")
I(f"v_and_b32 v{VW+3}, 0xffff0000, v{V_W2+1}")
I(f"v_mov_b32 v{V_T+2}, s{S_C1}")
I("s_waitcnt lgkmcnt(0)")
VP = 104
VT2 = 108
for j in range(4):
    for r in range(4):
        z = VZ + j*4 + r
        I(f"v_add_f32 v{z}, v{z}, v{VZ+(4+j)*4+r}")
        I(f"v_add_f32 v{VT2+r}, v{VZ+(8+j)*4+r}, v{VZ+(12+j)*4+r}")
        I(f"v_add_f32 v{z}, v{z}, v{VB+j}")
        I(f"v_add_f32 v{z}, v{z}, v{VT2+r}")
    for r in range(4):
        z = VZ + j*4 + r
        I(f"v_mul_f32 v{VT2+r}, v{z}, v{z}")
        I(f"v_fma_f32 v{VT2+r}, v{VT2+r}, s{S_C2}, v{V_T+2}")
        I(f"v_mul_f32 v{VT2+r}, v{VT2+r}, v{z}")
    for r in range(4): I(f"v_exp_f32 v{VT2+r}, v{VT2+r}")
    for r in range(4): I(f"v_add_f32 v{VT2+r}, 1.0, v{VT2+r}")
    for r in range(4): I(f"v_rcp_f32 v{VT2+r}, v{VT2+r}")
    for r in range(4):
        z = VZ + j*4 + r
        I(f"v_mul_f32 v{z}, v{z}, v{VT2+r}")
    for r in range(4):
        z = VZ + j*4 + r
        if j == 0: I(f"v_mul_f32 v{VP+r}, v{z}, v{VW+j}")
        else: I(f"v_fmac_f32 v{VP+r}, v{z}, v{VW+j}")
for sh in (1,2,4,8):
    for r in range(4): dpp_add(VP+r, f"row_shr:{sh} row_mask:0xf bank_mask:0xf bound_ctrl:0")
I(f"s_lshl_b32 s{S_T0}, s2, 8")
I(f"s_lshl_b32 s{S_T1}, s{S_W}, 6")
I(f"s_add_u32 s{S_T0}, s{S_T0}, s{S_T1}")
I(f"v_lshlrev_b32 v{V_T+3}, 4, v{V_G}")
I(f"s_mov_b64 s[{S_EX}:{S_EX+1}], exec")
I(f"s_mov_b32 exec_lo, 0x80008000")
I(f"s_mov_b32 exec_hi, 0x80008000")
I(f"buffer_store_dwordx4 v[{VP}:{VP+3}], v{V_T+3}, s[{R_WS}:{R_WS+3}], s{S_T0} offen sc1")
I(f"s_mov_b64 exec, s[{S_EX}:{S_EX+1}]")
I("s_waitcnt vmcnt(0)")
I("s_barrier")
I(f"s_cmp_lg_u32 s{S_W}, 0")
I("s_cbranch_scc1 L_end")
I(f"s_lshl_b32 s{S_T0}, s{S_MT}, 2")
I(f"v_mov_b32 v{V_T+4}, 1")
I(f"v_mov_b32 v{V_T+5}, 0")
I(f"s_mov_b64 exec, 1")
I(f"buffer_atomic_add v{V_T+4}, v{V_T+5}, s[{R_DBG}:{R_DBG+3}], s{S_T0} offen sc0")
I("s_waitcnt vmcnt(0)")
I(f"s_mov_b64 exec, -1")
I(f"v_readfirstlane_b32 s{S_T1}, v{V_T+4}")
I("s_nop 3")
I(f"s_cmp_lg_u32 s{S_T1}, 3")
I("s_cbranch_scc1 L_end")
I(f"s_lshl_b32 s{S_T0}, s{S_MT}, 10")
I(f"v_lshlrev_b32 v{V_T+5}, 2, v{V_L}")
for sl in range(4):
    I(f"buffer_load_dword v{V_T+6+sl}, v{V_T+5}, s[{R_WS}:{R_WS+3}], s{S_T0} offen offset:{sl*256} sc1")
I(f"s_lshl_b32 s{S_T1}, s{S_MT}, 8")
I(f"s_add_u32 s{S_T1}, s{S_T1}, {4096*4*4}")
I(f"buffer_load_dword v{V_T+10}, v{V_T+5}, s[{R_WS}:{R_WS+3}], s{S_T1} offen sc1")
I(f"v_lshlrev_b32 v{V_B2}, 16, v{V_B2}")
I("s_waitcnt vmcnt(0)")
I(f"v_add_f32 v{V_T+6}, v{V_T+6}, v{V_T+7}")
I(f"v_add_f32 v{V_T+8}, v{V_T+8}, v{V_T+9}")
I(f"v_add_f32 v{V_T+6}, v{V_T+6}, v{V_T+8}")
I(f"v_add_f32 v{V_T+6}, v{V_T+6}, v{V_B2}")
I(f"v_add_f32 v{V_T+6}, v{V_T+6}, v{V_T+10}")
I(f"v_cvt_pk_bf16_f32 v{V_T+6}, v{V_T+6}, v{V_T+6}")
I(f"s_lshl_b32 s{S_T0}, s{S_MT}, 7")
I(f"v_lshlrev_b32 v{V_T+5}, 1, v{V_L}")
I(f"buffer_store_short v{V_T+6}, v{V_T+5}, s[{R_OUT}:{R_OUT+3}], s{S_T0} offen")
L("L_end")

txt = "\n".join(hdr) + "\n; @launch grid=(256,1,1) block=(256,1,1) lds=131072\n"
txt += f""".amdgcn_target "amdgcn-amd-amdhsa--gfx950"
.text
.globl {NAME}
.p2align 8
.type {NAME},@function
{NAME}:
""" + "\n".join(out) + f"""
s_endpgm
.section .rodata,"a"
.p2align 6
.amdhsa_kernel {NAME}
  .amdhsa_next_free_vgpr 512
  .amdhsa_next_free_sgpr 102
  .amdhsa_accum_offset 256
  .amdhsa_group_segment_fixed_size 0
  .amdhsa_kernarg_size 80
  .amdhsa_user_sgpr_count 2
  .amdhsa_user_sgpr_kernarg_segment_ptr 1
  .amdhsa_system_sgpr_workgroup_id_x 1
.end_amdhsa_kernel
"""
open(sys.argv[1] if len(sys.argv) > 1 else 'standalone__deep_cross_pnn__recsys.s', 'w').write(txt)
```

```python
import sys
out = []
def I(s): out.append("    " + s)
def L(s): out.append(s + ":")

HDR = open('standalone__deep_cross_pnn__recsys.s.ref').read().split('\n')
hdr = [l for l in HDR if l.startswith(';') and not l.startswith('; @launch')]
NAME = "standalone__deep_cross_pnn__recsys_kernel"

S_MT, S_NS, S_W = 3, 4, 5
P_IDX, P_TAB, P_WP, P_W1, P_B1, P_W2, P_B2, P_OUT, P_DBG, P_WS = 16,18,20,22,24,26,28,30,32,34
R_IDX, R_TAB, R_WP, R_W1, R_B1, R_W2, R_WS, R_DBG, R_OUT, R_B2 = 36,40,44,48,52,56,60,64,68,72
S_SELLO, S_SELHI = 76, 77
S_T0, S_T1, S_T2, S_T3 = 78, 79, 80, 81
S_C1, S_C2 = 82, 83
S_EX = 84
S_BOFF = 86
V_L, V_I, V_G, V_G16 = 1, 2, 3, 4
V_BADDR = 5
V_T = 6
V_D = 16
V_WQ = 32
V_BF = 32
V_BR = 144
V_M = 244
V_PA = 244
V_B1 = 248
V_W2 = 250
V_B2 = 252
A_ACC = 0
A_AF = 64
A_AD = 128
A_PI = 228
A_E = 0
A_W1R = 0

def srd(r, p, size):
    I(f"s_mov_b32 s{r}, s{p}")
    I(f"s_and_b32 s{r+1}, s{p+1}, 0xffff")
    I(f"s_mov_b32 s{r+2}, {size}")
    I(f"s_mov_b32 s{r+3}, 0x00020000")

pairs = [(t1,t2) for t1 in range(7) for t2 in range(t1,7)]
def wq(p, r): return V_WQ + p*4 + r

I("s_cmp_ge_u32 s2, 256")
I("s_cbranch_scc1 L_end")
I("s_load_dwordx16 s[16:31], s[0:1], 0")
I("s_load_dwordx4 s[32:35], s[0:1], 64")
I(f"s_lshr_b32 s{S_MT}, s2, 2")
I(f"s_and_b32 s{S_NS}, s2, 3")
I(f"v_lshrrev_b32 v{V_T}, 6, v0")
I(f"v_and_b32 v{V_L}, 63, v0")
I(f"v_readfirstlane_b32 s{S_W}, v{V_T}")
I(f"v_and_b32 v{V_I}, 15, v0")
I(f"v_bfe_u32 v{V_G}, v0, 4, 2")
I(f"v_lshlrev_b32 v{V_G16}, 4, v{V_G}")
I(f"s_mov_b32 s{S_SELLO}, 0x05040100")
I(f"s_mov_b32 s{S_SELHI}, 0x07060302")
I(f"s_mov_b32 s{S_C1}, 0xc0135761")
I(f"s_mov_b32 s{S_C2}, 0xbdd2d3e8")
I("s_waitcnt lgkmcnt(0)")
srd(R_IDX, P_IDX, 4096*400)
srd(R_TAB, P_TAB, 128000)
srd(R_WP, P_WP, 20000)
srd(R_W1, P_W1, 6400*512)
srd(R_B1, P_B1, 512)
srd(R_W2, P_W2, 512)
srd(R_B2, P_B2, 2)
srd(R_WS, P_WS, 4096*5*4)
srd(R_DBG, P_DBG, 256)
srd(R_OUT, P_OUT, 8192)

LDS_MT = 128000
LDS_PT = 128000 + 25600
I(f"s_mul_i32 s{S_T0}, s{S_MT}, 25600")
I(f"s_mul_i32 s{S_T1}, s{S_W}, 100")
I(f"s_add_u32 s{S_T0}, s{S_T0}, s{S_T1}")
I(f"v_mul_u32_u24 v{V_T}, 400, v{V_L}")
for e in range(6):
    r = V_BR + e*4
    I(f"buffer_load_dwordx4 v[{r}:{r+3}], v{V_T}, s[{R_IDX}:{R_IDX+3}], s{S_T0} offen offset:{e*16}")
I(f"buffer_load_dword v{V_BR+24}, v{V_T}, s[{R_IDX}:{R_IDX+3}], s{S_T0} offen offset:96")
I(f"s_lshl_b32 s{S_T0}, s{S_MT}, 6")
I(f"s_lshl_b32 s{S_T1}, s{S_NS}, 4")
I(f"s_add_u32 s{S_T0}, s{S_T0}, s{S_T1}")
I(f"s_lshl_b32 s{S_T1}, s{S_W}, 2")
I(f"s_add_u32 s{S_T0}, s{S_T0}, s{S_T1}")
I(f"s_mul_i32 s{S_T0}, s{S_T0}, 400")
I(f"v_lshlrev_b32 v{V_T+1}, 2, v{V_L}")
I(f"v_add_u32 v{V_T+2}, 64, v{V_L}")
I(f"v_min_u32 v{V_T+2}, 99, v{V_T+2}")
I(f"v_lshlrev_b32 v{V_T+2}, 2, v{V_T+2}")
for q in range(4):
    I(f"buffer_load_dword v{V_BR+26+2*q}, v{V_T+1}, s[{R_IDX}:{R_IDX+3}], s{S_T0} offen offset:{q*400}")
    I(f"buffer_load_dword v{V_BR+27+2*q}, v{V_T+2}, s[{R_IDX}:{R_IDX+3}], s{S_T0} offen offset:{q*400}")
I(f"s_and_b32 s{S_T1}, s{S_W}, 1")
I(f"s_lshl_b32 s{S_T1}, s{S_T1}, 2")
I(f"v_lshrrev_b32 v{V_T+3}, 4, v{V_L}")
I(f"v_add_u32 v{V_T+3}, s{S_T1}, v{V_T+3}")
I(f"v_and_b32 v{V_T+4}, 7, v{V_L}")
I(f"v_xor_b32 v{V_T+4}, v{V_T+4}, v{V_T+3}")
I(f"v_lshlrev_b32 v{V_T+4}, 4, v{V_T+4}")
I(f"v_lshrrev_b32 v{V_T+3}, 3, v{V_L}")
I(f"v_lshl_or_b32 v{V_T+4}, v{V_T+3}, 7, v{V_T+4}")
I(f"s_lshl_b32 s{S_T2}, s{S_W}, 10")
L("L_dma")
I(f"s_mov_b32 m0, s{S_T2}")
I(f"s_add_u32 s{S_T3}, s{S_T2}, 4096")
I(f"buffer_load_dwordx4 v{V_T+4}, s[{R_TAB}:{R_TAB+3}], s{S_T2} offen lds")
I(f"s_mov_b32 s{S_T2}, s{S_T3}")
I(f"s_cmp_lt_u32 s{S_T2}, 128000")
I("s_cbranch_scc1 L_dma")
I("s_waitcnt vmcnt(31)")
def base_calc(src):
    I(f"v_bfe_u32 v{V_T+10}, v{src}, 1, 3")
    I(f"v_lshlrev_b32 v{src}, 7, v{src}")
    I(f"v_lshl_or_b32 v{src}, v{V_T+10}, 4, v{src}")
I(f"s_mul_i32 s{S_T0}, s{S_W}, 6400")
I(f"s_add_u32 s{S_T0}, s{S_T0}, {LDS_MT}")
I(f"v_lshlrev_b32 v{V_T+3}, 4, v{V_I}")
I(f"v_lshl_add_u32 v{V_T+3}, v{V_G}, 2, v{V_T+3}")
I(f"v_add_u32 v{V_T+3}, s{S_T0}, v{V_T+3}")
for f in range(25):
    base_calc(V_BR+f)
    I(f"ds_write_b32 v{V_T+3}, v{V_BR+f} offset:{f*256}")
I(f"s_lshl_b32 s{S_T0}, s{S_W}, 11")
I(f"s_add_u32 s{S_T0}, s{S_T0}, {LDS_PT}")
I(f"v_lshlrev_b32 v{V_T+3}, 5, v{V_I}")
I(f"v_lshl_add_u32 v{V_T+3}, v{V_G}, 2, v{V_T+3}")
I(f"v_add_u32 v{V_T+3}, s{S_T0}, v{V_T+3}")
for q in range(4):
    base_calc(V_BR+26+2*q); base_calc(V_BR+27+2*q)
    I(f"ds_write_b32 v{V_T+3}, v{V_BR+26+2*q} offset:{q*512}")
    I(f"ds_write_b32 v{V_T+3}, v{V_BR+27+2*q} offset:{q*512+16}")
BIG = 0x7ffffff0
I(f"v_mul_u32_u24 v{V_T+5}, 200, v{V_I}")
I(f"v_lshl_add_u32 v{V_T+5}, v{V_G}, 3, v{V_T+5}")
I(f"v_mov_b32 v{V_T+9}, {BIG}")
I(f"v_cmp_gt_u32 vcc, 4, v{V_I}")
I(f"s_nop 1")
I(f"v_cndmask_b32 v{V_T+6}, v{V_T+9}, v{V_T+5}, vcc")
I(f"v_cmp_eq_u32 vcc, 0, v{V_G}")
I(f"s_nop 1")
I(f"v_cndmask_b32 v{V_T+7}, v{V_T+9}, v{V_T+6}, vcc")
I(f"v_mul_u32_u24 v{V_T+8}, 800, v{V_G}")
I(f"v_lshl_add_u32 v{V_T+8}, v{V_I}, 1, v{V_T+8}")
I(f"v_cmp_gt_u32 vcc, 4, v{V_I}")
I(f"s_nop 1")
I(f"v_cndmask_b32 v{V_T+9}, v{V_T+9}, v{V_T+8}, vcc")
for p,(t1,t2) in enumerate(pairs):
    va = V_T+5 if t2 < 6 else (V_T+6 if t1 < 6 else V_T+7)
    I(f"s_mov_b32 s{S_T1}, {t2*3200}")
    I(f"buffer_load_dwordx2 a[{A_W1R+2*p}:{A_W1R+2*p+1}], v{va}, s[{R_WP}:{R_WP+3}], s{S_T1} offen offset:{t1*32}")
    if t1 < t2:
        va = V_T+8 if t2 < 6 else V_T+9
        I(f"s_mov_b32 s{S_T1}, {t1*3200}")
        for r in range(4):
            I(f"buffer_load_ushort v{wq(p,r)}, v{va}, s[{R_WP}:{R_WP+3}], s{S_T1} offen offset:{r*200+t2*32}")
I(f"s_lshl_b32 s{S_T1}, s{S_NS}, 7")
I(f"v_lshlrev_b32 v{V_T+5}, 3, v{V_I}")
I(f"buffer_load_dwordx2 v[{V_B1}:{V_B1+1}], v{V_T+5}, s[{R_B1}:{R_B1+3}], s{S_T1} offen")
I(f"buffer_load_dwordx2 v[{V_W2}:{V_W2+1}], v{V_T+5}, s[{R_W2}:{R_W2+3}], s{S_T1} offen")
I(f"v_mov_b32 v{V_T+6}, 0")
I(f"buffer_load_ushort v{V_B2}, v{V_T+6}, s[{R_B2}:{R_B2+3}], 0 offen")
I(f"v_lshlrev_b32 v{V_BADDR}, 12, v{V_G}")
I(f"v_lshl_add_u32 v{V_BADDR}, v{V_I}, 3, v{V_BADDR}")
I(f"s_lshl_b32 s{S_T1}, s{S_NS}, 7")
I(f"v_add_u32 v{V_BADDR}, s{S_T1}, v{V_BADDR}")
I(f"s_mul_i32 s{S_BOFF}, s{S_W}, {25*32768}")
def bload(f):
    rb = f % 2
    for s in range(2):
        I(f"s_add_u32 s{S_T3}, s{S_BOFF}, {f*32768 + s*16384}")
        for r in range(8):
            d = V_BR + rb*32 + (s*8+r)*2
            I(f"buffer_load_dwordx2 v[{d}:{d+1}], v{V_BADDR}, s[{R_W1}:{R_W1+3}], s{S_T3} offen offset:{r*512}")
I("s_waitcnt vmcnt(0) lgkmcnt(0)")
I("s_barrier")
for f in range(2): bload(f)
for p,(t1,t2) in enumerate(pairs):
    a0, a1 = V_T+10, V_T+11
    I(f"v_accvgpr_read_b32 v{a0}, a{A_W1R+2*p}")
    I(f"v_accvgpr_read_b32 v{a1}, a{A_W1R+2*p+1}")
    if t1 < t2:
        for r in range(4):
            I(f"v_lshlrev_b32 v{wq(p,r)}, 16, v{wq(p,r)}")
        I(f"v_lshlrev_b32 v{V_T+12}, 16, v{a0}")
        I(f"v_and_b32 v{V_T+13}, 0xffff0000, v{a0}")
        I(f"v_lshlrev_b32 v{V_T+14}, 16, v{a1}")
        I(f"v_and_b32 v{V_T+15}, 0xffff0000, v{a1}")
        for r in range(4):
            I(f"v_add_f32 v{wq(p,r)}, v{wq(p,r)}, v{V_T+12+r}")
    else:
        I(f"v_lshlrev_b32 v{wq(p,0)}, 16, v{a0}")
        I(f"v_and_b32 v{wq(p,1)}, 0xffff0000, v{a0}")
        I(f"v_lshlrev_b32 v{wq(p,2)}, 16, v{a1}")
        I(f"v_and_b32 v{wq(p,3)}, 0xffff0000, v{a1}")

V_G16B = 15
I(f"v_xor_b32 v{V_G16B}, 64, v{V_G16}")
def efrag(t, s): return A_E + 56 + (t*2+s)*4
PQ = 232
S_Q = 87
I(f"s_lshl_b32 s{S_T0}, s{S_W}, 11")
I(f"s_add_u32 s{S_T0}, s{S_T0}, {LDS_PT}")
I(f"v_lshlrev_b32 v{V_T+3}, 5, v{V_I}")
I(f"v_add_u32 v{V_T+3}, s{S_T0}, v{V_T+3}")
I(f"s_lshl_b32 s{S_T0}, s{S_MT}, 6")
I(f"s_lshl_b32 s{S_T1}, s{S_NS}, 4")
I(f"s_add_u32 s{S_T0}, s{S_T0}, s{S_T1}")
I(f"s_lshl_b32 s{S_T1}, s{S_W}, 2")
I(f"s_add_u32 s{S_T0}, s{S_T0}, s{S_T1}")
I(f"s_lshl_b32 s{S_T0}, s{S_T0}, 2")
I(f"s_add_u32 s{S_T2}, s{S_T0}, {4096*4*4}")
I(f"v_mov_b32 v{V_T+4}, 0")
I(f"s_mov_b32 s{S_Q}, 0")
L("L_pnn")
I(f"ds_read_b128 v[{PQ}:{PQ+3}], v{V_T+3}")
I(f"ds_read_b128 v[{PQ+4}:{PQ+7}], v{V_T+3} offset:16")
I(f"v_mov_b32 v{V_PA}, 0")
I(f"v_add_u32 v{V_T+3}, 512, v{V_T+3}")
I("s_waitcnt lgkmcnt(0)")
for t in range(7):
    I(f"v_xor_b32 v{V_T+5}, v{PQ+t}, v{V_G16}")
    I(f"v_xor_b32 v{V_T+6}, v{PQ+t}, v{V_G16B}")
    e0 = efrag(t,0); e1 = efrag(t,1)
    I(f"ds_read_b128 a[{e0}:{e0+3}], v{V_T+5}")
    I(f"ds_read_b128 a[{e1}:{e1+3}], v{V_T+6}")
I("s_waitcnt lgkmcnt(0)")
LAG = 3
for p in range(28 + LAG):
    if p < 28:
        t1,t2 = pairs[p]; d = V_D + (p%4)*4
        a0,b0 = efrag(t1,0), efrag(t2,0); a1,b1 = efrag(t1,1), efrag(t2,1)
        I(f"v_mfma_f32_16x16x32_bf16 v[{d}:{d+3}], a[{a0}:{a0+3}], a[{b0}:{b0+3}], 0")
        I(f"v_mfma_f32_16x16x32_bf16 v[{d}:{d+3}], a[{a1}:{a1+3}], a[{b1}:{b1+3}], v[{d}:{d+3}]")
    else:
        I("s_nop 3")
    pp = p - LAG
    if pp >= 0:
        d = V_D + (pp%4)*4
        for r in range(4):
            I(f"v_fmac_f32 v{V_PA}, v{d+r}, v{wq(pp,r)}")
def dpp_add(v, mod):
    I("s_nop 1")
    I(f"v_add_f32_dpp v{v}, v{v}, v{v} {mod}")
for sh in (1,2,4,8): dpp_add(V_PA, f"row_shr:{sh} row_mask:0xf bank_mask:0xf bound_ctrl:0")
dpp_add(V_PA, "row_bcast:15 row_mask:0xa bank_mask:0xf")
dpp_add(V_PA, "row_bcast:31 row_mask:0xc bank_mask:0xf")
I(f"s_mov_b32 exec_lo, 0")
I(f"s_mov_b32 exec_hi, 0x80000000")
I(f"buffer_store_dword v{V_PA}, v{V_T+4}, s[{R_WS}:{R_WS+3}], s{S_T2} offen sc1")
I(f"s_mov_b64 exec, -1")
I(f"s_add_u32 s{S_T2}, s{S_T2}, 4")
I(f"s_add_u32 s{S_Q}, s{S_Q}, 1")
I(f"s_cmp_lt_u32 s{S_Q}, 4")
I("s_cbranch_scc1 L_pnn")

def af(f, t, s): return A_AF + (f%2)*32 + (t*2+s)*4
def bf(f, s, j): return V_BF + (f%2)*32 + (s*4+j)*4
def acc(t, j): return A_ACC + (t*4+j)*4
V_MT = V_T+3
def aq(f): return PQ + (f%2)*4
def a_reads(f):
    r = []
    for t in range(4):
        ta = V_D + t*2
        r.append(f"v_xor_b32 v{ta}, v{aq(f)+t}, v{V_G16}")
        r.append(f"v_xor_b32 v{ta+1}, v{aq(f)+t}, v{V_G16B}")
        e0 = af(f,t,0); e1 = af(f,t,1)
        r.append(f"ds_read_b128 a[{e0}:{e0+3}], v{ta}")
        r.append(f"ds_read_b128 a[{e1}:{e1+3}], v{ta+1}")
    return r
def perms(f):
    r = []
    rb = f % 2
    for s in range(2):
        for j in range(4):
            for m in range(4):
                lo = V_BR + rb*32 + (s*8+2*m)*2 + (j>>1)
                hi = V_BR + rb*32 + (s*8+2*m+1)*2 + (j>>1)
                sel = S_SELLO if (j&1)==0 else S_SELHI
                r.append(f"v_perm_b32 v{bf(f,s,j)+m}, v{hi}, v{lo}, s{sel}")
    return r
S_BL = 88
def bload_list(f, rel):
    r = []
    rb = f % 2
    for s in range(2):
        r.append(f"s_add_u32 s{S_T3}, s{S_BL}, {rel*32768 + s*16384}")
        for rr in range(8):
            d = V_BR + rb*32 + (s*8+rr)*2
            r.append(f"buffer_load_dwordx2 v[{d}:{d+1}], v{V_BADDR}, s[{R_W1}:{R_W1+3}], s{S_T3} offen offset:{rr*512}")
    return r
def mfmas(f):
    mf = []
    for s in range(2):
        for t in range(4):
            for j in range(4):
                a = af(f,t,s); b = bf(f,s,j); c = acc(t,j)
                mf.append(f"v_mfma_f32_16x16x32_bf16 a[{c}:{c+3}], a[{a}:{a+3}], v[{b}:{b+3}], a[{c}:{c+3}]")
    return mf
I(f"s_mul_i32 s{S_T0}, s{S_W}, 6400")
I(f"s_add_u32 s{S_T0}, s{S_T0}, {LDS_MT}")
I(f"v_lshlrev_b32 v{V_MT}, 4, v{V_I}")
I(f"v_add_u32 v{V_MT}, s{S_T0}, v{V_MT}")
I(f"ds_read_b128 v[{aq(0)}:{aq(0)+3}], v{V_MT}")
I(f"ds_read_b128 v[{aq(1)}:{aq(1)+3}], v{V_MT} offset:256")
for k in range(64): I(f"v_accvgpr_write_b32 a{A_ACC+k}, 0")
I("s_waitcnt lgkmcnt(0)")
for x in a_reads(0): I(x)
I("s_waitcnt vmcnt(20)")
for x in perms(0): I(x)
I(f"s_add_u32 s{S_BL}, s{S_BOFF}, {2*32768}")
for x in bload_list(2, 0): I(x)
I(f"s_add_u32 s{S_BL}, s{S_BOFF}, {3*32768}")
I(f"s_mov_b32 s{S_Q}, 0")
I("s_waitcnt lgkmcnt(0)")
def body(f):
    side = [f"ds_read_b128 v[{aq(f)}:{aq(f)+3}], v{V_MT} offset:{(2+f)*256}"]
    side = a_reads(f+1) + side
    side.append("s_waitcnt vmcnt(16)")
    side += perms(f+1)
    side += bload_list(f+3, f)
    k = 0
    for m in mfmas(f):
        I(m)
        for _ in range(2):
            if k < len(side): I(side[k]); k += 1
    while k < len(side): I(side[k]); k += 1
    I("s_waitcnt lgkmcnt(0)")
L("L_mlp")
I(f"s_cmp_eq_u32 s{S_Q}, 11")
I(f"s_cselect_b32 s{S_BL}, 0x40000000, s{S_BL}")
body(0)
body(1)
I(f"v_add_u32 v{V_MT}, 512, v{V_MT}")
I(f"s_add_u32 s{S_BL}, s{S_BL}, 65536")
I(f"s_add_u32 s{S_Q}, s{S_Q}, 1")
I(f"s_cmp_lt_u32 s{S_Q}, 12")
I("s_cbranch_scc1 L_mlp")
for m in mfmas(0): I(m)

I("s_nop 7"); I("s_nop 7")
I("s_barrier")
I(f"v_lshlrev_b32 v{V_T}, 4, v{V_L}")
I(f"s_lshl_b32 s{S_T0}, s{S_W}, 14")
I(f"v_add_u32 v{V_T+1}, s{S_T0}, v{V_T}")
for t in range(4):
    for j in range(4):
        c = acc(t,j)
        I(f"ds_write_b128 v{V_T+1}, a[{c}:{c+3}] offset:{(t*4+j)*1024}")
I("s_waitcnt lgkmcnt(0)")
I("s_barrier")
I(f"s_lshl_b32 s{S_T0}, s{S_W}, 12")
I(f"v_add_u32 v{V_T+1}, s{S_T0}, v{V_T}")
VZ = 32
for wp in range(4):
    for j in range(4):
        d = VZ + (wp*4+j)*4
        I(f"ds_read_b128 v[{d}:{d+3}], v{V_T+1} offset:{wp*16384+j*1024}")
VB, VW = 96, 100
I(f"v_lshlrev_b32 v{VB}, 16, v{V_B1}")
I(f"v_and_b32 v{VB+1}, 0xffff0000, v{V_B1}")
I(f"v_lshlrev_b32 v{VB+2}, 16, v{V_B1+1}")
I(f"v_and_b32 v{VB+3}, 0xffff0000, v{V_B1+1}")
I(f"v_lshlrev_b32 v{VW}, 16, v{V_W2}")
I(f"v_and_b32 v{VW+1}, 0xffff0000, v{V_W2}")
I(f"v_lshlrev_b32 v{VW+2}, 16, v{V_W2+1}")
I(f"v_and_b32 v{VW+3}, 0xffff0000, v{V_W2+1}")
I(f"v_mov_b32 v{V_T+2}, s{S_C1}")
I("s_waitcnt lgkmcnt(0)")
VP = 104
VT2 = 108
for j in range(4):
    for r in range(4):
        z = VZ + j*4 + r
        I(f"v_add_f32 v{z}, v{z}, v{VZ+(4+j)*4+r}")
        I(f"v_add_f32 v{VT2+r}, v{VZ+(8+j)*4+r}, v{VZ+(12+j)*4+r}")
        I(f"v_add_f32 v{z}, v{z}, v{VB+j}")
        I(f"v_add_f32 v{z}, v{z}, v{VT2+r}")
    for r in range(4):
        z = VZ + j*4 + r
        I(f"v_mul_f32 v{VT2+r}, v{z}, v{z}")
        I(f"v_fma_f32 v{VT2+r}, v{VT2+r}, s{S_C2}, v{V_T+2}")
        I(f"v_mul_f32 v{VT2+r}, v{VT2+r}, v{z}")
    for r in range(4): I(f"v_exp_f32 v{VT2+r}, v{VT2+r}")
    for r in range(4): I(f"v_add_f32 v{VT2+r}, 1.0, v{VT2+r}")
    for r in range(4): I(f"v_rcp_f32 v{VT2+r}, v{VT2+r}")
    for r in range(4):
        z = VZ + j*4 + r
        I(f"v_mul_f32 v{z}, v{z}, v{VT2+r}")
    for r in range(4):
        z = VZ + j*4 + r
        if j == 0: I(f"v_mul_f32 v{VP+r}, v{z}, v{VW+j}")
        else: I(f"v_fmac_f32 v{VP+r}, v{z}, v{VW+j}")
for sh in (1,2,4,8):
    for r in range(4): dpp_add(VP+r, f"row_shr:{sh} row_mask:0xf bank_mask:0xf bound_ctrl:0")
I(f"s_lshl_b32 s{S_T0}, s2, 8")
I(f"s_lshl_b32 s{S_T1}, s{S_W}, 6")
I(f"s_add_u32 s{S_T0}, s{S_T0}, s{S_T1}")
I(f"v_lshlrev_b32 v{V_T+3}, 4, v{V_G}")
I(f"s_mov_b64 s[{S_EX}:{S_EX+1}], exec")
I(f"s_mov_b32 exec_lo, 0x80008000")
I(f"s_mov_b32 exec_hi, 0x80008000")
I(f"buffer_store_dwordx4 v[{VP}:{VP+3}], v{V_T+3}, s[{R_WS}:{R_WS+3}], s{S_T0} offen sc1")
I(f"s_mov_b64 exec, s[{S_EX}:{S_EX+1}]")
I("s_waitcnt vmcnt(0)")
I("s_barrier")
I(f"s_cmp_lg_u32 s{S_W}, 0")
I("s_cbranch_scc1 L_end")
I(f"s_lshl_b32 s{S_T0}, s{S_MT}, 2")
I(f"v_mov_b32 v{V_T+4}, 1")
I(f"v_mov_b32 v{V_T+5}, 0")
I(f"s_mov_b64 exec, 1")
I(f"buffer_atomic_add v{V_T+4}, v{V_T+5}, s[{R_DBG}:{R_DBG+3}], s{S_T0} offen sc0")
I("s_waitcnt vmcnt(0)")
I(f"s_mov_b64 exec, -1")
I(f"v_readfirstlane_b32 s{S_T1}, v{V_T+4}")
I("s_nop 3")
I(f"s_cmp_lg_u32 s{S_T1}, 3")
I("s_cbranch_scc1 L_end")
I(f"s_lshl_b32 s{S_T0}, s{S_MT}, 10")
I(f"v_lshlrev_b32 v{V_T+5}, 2, v{V_L}")
for sl in range(4):
    I(f"buffer_load_dword v{V_T+6+sl}, v{V_T+5}, s[{R_WS}:{R_WS+3}], s{S_T0} offen offset:{sl*256} sc1")
I(f"s_lshl_b32 s{S_T1}, s{S_MT}, 8")
I(f"s_add_u32 s{S_T1}, s{S_T1}, {4096*4*4}")
I(f"buffer_load_dword v{V_T+10}, v{V_T+5}, s[{R_WS}:{R_WS+3}], s{S_T1} offen sc1")
I(f"v_lshlrev_b32 v{V_B2}, 16, v{V_B2}")
I("s_waitcnt vmcnt(0)")
I(f"v_add_f32 v{V_T+6}, v{V_T+6}, v{V_T+7}")
I(f"v_add_f32 v{V_T+8}, v{V_T+8}, v{V_T+9}")
I(f"v_add_f32 v{V_T+6}, v{V_T+6}, v{V_T+8}")
I(f"v_add_f32 v{V_T+6}, v{V_T+6}, v{V_B2}")
I(f"v_add_f32 v{V_T+6}, v{V_T+6}, v{V_T+10}")
I(f"v_cvt_pk_bf16_f32 v{V_T+6}, v{V_T+6}, v{V_T+6}")
I(f"s_lshl_b32 s{S_T0}, s{S_MT}, 7")
I(f"v_lshlrev_b32 v{V_T+5}, 1, v{V_L}")
I(f"buffer_store_short v{V_T+6}, v{V_T+5}, s[{R_OUT}:{R_OUT+3}], s{S_T0} offen")
L("L_end")

txt = "\n".join(hdr) + "\n; @launch grid=(256,1,1) block=(256,1,1) lds=161792\n"
txt += f""".amdgcn_target "amdgcn-amd-amdhsa--gfx950"
.text
.globl {NAME}
.p2align 8
.type {NAME},@function
{NAME}:
""" + "\n".join(out) + f"""
s_endpgm
.section .rodata,"a"
.p2align 6
.amdhsa_kernel {NAME}
  .amdhsa_next_free_vgpr 512
  .amdhsa_next_free_sgpr 102
  .amdhsa_accum_offset 256
  .amdhsa_group_segment_fixed_size 0
  .amdhsa_kernarg_size 80
  .amdhsa_user_sgpr_count 2
  .amdhsa_user_sgpr_kernarg_segment_ptr 1
  .amdhsa_system_sgpr_workgroup_id_x 1
.end_amdhsa_kernel
"""
open(sys.argv[1] if len(sys.argv) > 1 else 'standalone__deep_cross_pnn__recsys.s', 'w').write(txt)
```

```python
import sys
out = []
def I(s): out.append("    " + s)
def L(s): out.append(s + ":")

HDR = open('standalone__deep_cross_pnn__recsys.s.ref').read().split('\n')
hdr = [l for l in HDR if l.startswith(';') and not l.startswith('; @launch')]
NAME = "standalone__deep_cross_pnn__recsys_kernel"

S_MT, S_NS, S_W = 3, 4, 5
P_IDX, P_TAB, P_WP, P_W1, P_B1, P_W2, P_B2, P_OUT, P_DBG, P_WS = 16,18,20,22,24,26,28,30,32,34
R_IDX, R_TAB, R_WP, R_W1, R_B1, R_W2, R_WS, R_DBG, R_OUT, R_B2 = 36,40,44,48,52,56,60,64,68,72
S_SELLO, S_SELHI = 76, 77
S_T0, S_T1, S_T2, S_T3 = 78, 79, 80, 81
S_C1, S_C2 = 82, 83
S_EX = 84
S_BOFF = 86
V_L, V_I, V_G, V_G16 = 1, 2, 3, 4
V_BADDR = 5
V_T = 6
V_D = 16
V_WQ = 32
V_BF = 32
V_BR = 144
V_M = 244
V_PA = 244
V_B1 = 248
V_W2 = 250
V_B2 = 252
A_ACC = 0
A_AF = 64
A_AD = 128
A_PI = 228
A_E = 0
A_W1R = 0

def srd(r, p, size):
    I(f"s_mov_b32 s{r}, s{p}")
    I(f"s_and_b32 s{r+1}, s{p+1}, 0xffff")
    I(f"s_mov_b32 s{r+2}, {size}")
    I(f"s_mov_b32 s{r+3}, 0x00020000")

pairs = [(t1,t2) for t1 in range(7) for t2 in range(t1,7)]
def wq(p, r): return V_WQ + p*4 + r

I("s_cmp_ge_u32 s2, 256")
I("s_cbranch_scc1 L_end")
I("s_load_dwordx16 s[16:31], s[0:1], 0")
I("s_load_dwordx4 s[32:35], s[0:1], 64")
I(f"s_lshr_b32 s{S_MT}, s2, 2")
I(f"s_and_b32 s{S_NS}, s2, 3")
I(f"v_lshrrev_b32 v{V_T}, 6, v0")
I(f"v_and_b32 v{V_L}, 63, v0")
I(f"v_readfirstlane_b32 s{S_W}, v{V_T}")
I(f"v_and_b32 v{V_I}, 15, v0")
I(f"v_bfe_u32 v{V_G}, v0, 4, 2")
I(f"v_lshlrev_b32 v{V_G16}, 4, v{V_G}")
I(f"s_mov_b32 s{S_SELLO}, 0x05040100")
I(f"s_mov_b32 s{S_SELHI}, 0x07060302")
I(f"s_mov_b32 s{S_C1}, 0xc0135761")
I(f"s_mov_b32 s{S_C2}, 0xbdd2d3e8")
I("s_waitcnt lgkmcnt(0)")
srd(R_IDX, P_IDX, 4096*400)
srd(R_TAB, P_TAB, 128000)
srd(R_WP, P_WP, 20000)
srd(R_W1, P_W1, 6400*512)
srd(R_B1, P_B1, 512)
srd(R_W2, P_W2, 512)
srd(R_B2, P_B2, 2)
srd(R_WS, P_WS, 4096*5*4)
srd(R_DBG, P_DBG, 256)
srd(R_OUT, P_OUT, 8192)

LDS_MT = 128000
LDS_PT = 128000 + 25600
I(f"s_mul_i32 s{S_T0}, s{S_MT}, 25600")
I(f"s_mul_i32 s{S_T1}, s{S_W}, 100")
I(f"s_add_u32 s{S_T0}, s{S_T0}, s{S_T1}")
I(f"v_mul_u32_u24 v{V_T}, 400, v{V_L}")
for e in range(6):
    r = V_BR + e*4
    I(f"buffer_load_dwordx4 v[{r}:{r+3}], v{V_T}, s[{R_IDX}:{R_IDX+3}], s{S_T0} offen offset:{e*16}")
I(f"buffer_load_dword v{V_BR+24}, v{V_T}, s[{R_IDX}:{R_IDX+3}], s{S_T0} offen offset:96")
I(f"s_lshl_b32 s{S_T0}, s{S_MT}, 6")
I(f"s_lshl_b32 s{S_T1}, s{S_NS}, 4")
I(f"s_add_u32 s{S_T0}, s{S_T0}, s{S_T1}")
I(f"s_lshl_b32 s{S_T1}, s{S_W}, 2")
I(f"s_add_u32 s{S_T0}, s{S_T0}, s{S_T1}")
I(f"s_mul_i32 s{S_T0}, s{S_T0}, 400")
I(f"v_lshlrev_b32 v{V_T+1}, 2, v{V_L}")
I(f"v_add_u32 v{V_T+2}, 64, v{V_L}")
I(f"v_min_u32 v{V_T+2}, 99, v{V_T+2}")
I(f"v_lshlrev_b32 v{V_T+2}, 2, v{V_T+2}")
for q in range(4):
    I(f"buffer_load_dword v{V_BR+26+2*q}, v{V_T+1}, s[{R_IDX}:{R_IDX+3}], s{S_T0} offen offset:{q*400}")
    I(f"buffer_load_dword v{V_BR+27+2*q}, v{V_T+2}, s[{R_IDX}:{R_IDX+3}], s{S_T0} offen offset:{q*400}")
I(f"s_and_b32 s{S_T1}, s{S_W}, 1")
I(f"s_lshl_b32 s{S_T1}, s{S_T1}, 2")
I(f"v_lshrrev_b32 v{V_T+3}, 4, v{V_L}")
I(f"v_add_u32 v{V_T+3}, s{S_T1}, v{V_T+3}")
I(f"v_and_b32 v{V_T+4}, 7, v{V_L}")
I(f"v_xor_b32 v{V_T+4}, v{V_T+4}, v{V_T+3}")
I(f"v_lshlrev_b32 v{V_T+4}, 4, v{V_T+4}")
I(f"v_lshrrev_b32 v{V_T+3}, 3, v{V_L}")
I(f"v_lshl_or_b32 v{V_T+4}, v{V_T+3}, 7, v{V_T+4}")
I(f"s_lshl_b32 s{S_T2}, s{S_W}, 10")
L("L_dma")
I(f"s_mov_b32 m0, s{S_T2}")
I(f"s_add_u32 s{S_T3}, s{S_T2}, 4096")
I(f"buffer_load_dwordx4 v{V_T+4}, s[{R_TAB}:{R_TAB+3}], s{S_T2} offen lds")
I(f"s_mov_b32 s{S_T2}, s{S_T3}")
I(f"s_cmp_lt_u32 s{S_T2}, 128000")
I("s_cbranch_scc1 L_dma")
I("s_waitcnt vmcnt(31)")
def base_calc(src):
    I(f"v_bfe_u32 v{V_T+10}, v{src}, 1, 3")
    I(f"v_lshlrev_b32 v{src}, 7, v{src}")
    I(f"v_lshl_or_b32 v{src}, v{V_T+10}, 4, v{src}")
I(f"s_mul_i32 s{S_T0}, s{S_W}, 6400")
I(f"s_add_u32 s{S_T0}, s{S_T0}, {LDS_MT}")
I(f"v_lshlrev_b32 v{V_T+3}, 4, v{V_I}")
I(f"v_lshl_add_u32 v{V_T+3}, v{V_G}, 2, v{V_T+3}")
I(f"v_add_u32 v{V_T+3}, s{S_T0}, v{V_T+3}")
for f in range(25):
    base_calc(V_BR+f)
    I(f"ds_write_b32 v{V_T+3}, v{V_BR+f} offset:{f*256}")
I(f"s_lshl_b32 s{S_T0}, s{S_W}, 11")
I(f"s_add_u32 s{S_T0}, s{S_T0}, {LDS_PT}")
I(f"v_lshlrev_b32 v{V_T+3}, 5, v{V_I}")
I(f"v_lshl_add_u32 v{V_T+3}, v{V_G}, 2, v{V_T+3}")
I(f"v_add_u32 v{V_T+3}, s{S_T0}, v{V_T+3}")
for q in range(4):
    base_calc(V_BR+26+2*q); base_calc(V_BR+27+2*q)
    I(f"ds_write_b32 v{V_T+3}, v{V_BR+26+2*q} offset:{q*512}")
    I(f"ds_write_b32 v{V_T+3}, v{V_BR+27+2*q} offset:{q*512+16}")
BIG = 0x7ffffff0
I(f"v_mul_u32_u24 v{V_T+5}, 200, v{V_I}")
I(f"v_lshl_add_u32 v{V_T+5}, v{V_G}, 3, v{V_T+5}")
I(f"v_mov_b32 v{V_T+9}, {BIG}")
I(f"v_cmp_gt_u32 vcc, 4, v{V_I}")
I(f"s_nop 1")
I(f"v_cndmask_b32 v{V_T+6}, v{V_T+9}, v{V_T+5}, vcc")
I(f"v_cmp_eq_u32 vcc, 0, v{V_G}")
I(f"s_nop 1")
I(f"v_cndmask_b32 v{V_T+7}, v{V_T+9}, v{V_T+6}, vcc")
I(f"v_mul_u32_u24 v{V_T+8}, 800, v{V_G}")
I(f"v_lshl_add_u32 v{V_T+8}, v{V_I}, 1, v{V_T+8}")
I(f"v_cmp_gt_u32 vcc, 4, v{V_I}")
I(f"s_nop 1")
I(f"v_cndmask_b32 v{V_T+9}, v{V_T+9}, v{V_T+8}, vcc")
for p,(t1,t2) in enumerate(pairs):
    va = V_T+5 if t2 < 6 else (V_T+6 if t1 < 6 else V_T+7)
    I(f"s_mov_b32 s{S_T1}, {t2*3200}")
    I(f"buffer_load_dwordx2 a[{A_W1R+2*p}:{A_W1R+2*p+1}], v{va}, s[{R_WP}:{R_WP+3}], s{S_T1} offen offset:{t1*32}")
    if t1 < t2:
        va = V_T+8 if t2 < 6 else V_T+9
        I(f"s_mov_b32 s{S_T1}, {t1*3200}")
        for r in range(4):
            I(f"buffer_load_ushort v{wq(p,r)}, v{va}, s[{R_WP}:{R_WP+3}], s{S_T1} offen offset:{r*200+t2*32}")
I(f"s_lshl_b32 s{S_T1}, s{S_NS}, 7")
I(f"v_and_b32 v253, 3, v{V_I}")
I(f"v_lshrrev_b32 v254, 3, v{V_I}")
I(f"v_lshl_add_u32 v253, v254, 2, v253")
I(f"v_bfe_u32 v254, v{V_I}, 2, 1")
I(f"v_lshlrev_b32 v{V_T+5}, 4, v253")
I(f"v_lshl_add_u32 v{V_T+5}, v254, 3, v{V_T+5}")
I(f"buffer_load_dwordx2 v[{V_B1}:{V_B1+1}], v{V_T+5}, s[{R_B1}:{R_B1+3}], s{S_T1} offen")
I(f"buffer_load_dwordx2 v[{V_W2}:{V_W2+1}], v{V_T+5}, s[{R_W2}:{R_W2+3}], s{S_T1} offen")
I(f"v_mov_b32 v{V_T+6}, 0")
I(f"buffer_load_ushort v{V_B2}, v{V_T+6}, s[{R_B2}:{R_B2+3}], 0 offen")
I(f"v_lshlrev_b32 v{V_BADDR}, 12, v{V_G}")
I(f"v_lshl_add_u32 v{V_BADDR}, v253, 4, v{V_BADDR}")
I(f"v_lshl_add_u32 v{V_BADDR}, v254, 11, v{V_BADDR}")
I(f"s_lshl_b32 s{S_T1}, s{S_NS}, 7")
I(f"v_add_u32 v{V_BADDR}, s{S_T1}, v{V_BADDR}")
I(f"s_mul_i32 s{S_BOFF}, s{S_W}, {25*32768}")
def bload(f):
    rb = f % 2
    for s in range(2):
        I(f"s_add_u32 s{S_T3}, s{S_BOFF}, {f*32768 + s*16384}")
        for r in range(4):
            d = V_BR + rb*32 + (s*4+r)*4
            I(f"buffer_load_dwordx4 v[{d}:{d+3}], v{V_BADDR}, s[{R_W1}:{R_W1+3}], s{S_T3} offen offset:{r*512}")
I("s_waitcnt vmcnt(0) lgkmcnt(0)")
I("s_barrier")
for f in range(2): bload(f)
for p,(t1,t2) in enumerate(pairs):
    a0, a1 = V_T+10, V_T+11
    I(f"v_accvgpr_read_b32 v{a0}, a{A_W1R+2*p}")
    I(f"v_accvgpr_read_b32 v{a1}, a{A_W1R+2*p+1}")
    if t1 < t2:
        for r in range(4):
            I(f"v_lshlrev_b32 v{wq(p,r)}, 16, v{wq(p,r)}")
        I(f"v_lshlrev_b32 v{V_T+12}, 16, v{a0}")
        I(f"v_and_b32 v{V_T+13}, 0xffff0000, v{a0}")
        I(f"v_lshlrev_b32 v{V_T+14}, 16, v{a1}")
        I(f"v_and_b32 v{V_T+15}, 0xffff0000, v{a1}")
        for r in range(4):
            I(f"v_add_f32 v{wq(p,r)}, v{wq(p,r)}, v{V_T+12+r}")
    else:
        I(f"v_lshlrev_b32 v{wq(p,0)}, 16, v{a0}")
        I(f"v_and_b32 v{wq(p,1)}, 0xffff0000, v{a0}")
        I(f"v_lshlrev_b32 v{wq(p,2)}, 16, v{a1}")
        I(f"v_and_b32 v{wq(p,3)}, 0xffff0000, v{a1}")

V_G16B = 15
I(f"v_xor_b32 v{V_G16B}, 64, v{V_G16}")
def efrag(t, s): return A_E + 56 + (t*2+s)*4
PQ = 232
S_Q = 87
I(f"s_lshl_b32 s{S_T0}, s{S_W}, 11")
I(f"s_add_u32 s{S_T0}, s{S_T0}, {LDS_PT}")
I(f"v_lshlrev_b32 v{V_T+3}, 5, v{V_I}")
I(f"v_add_u32 v{V_T+3}, s{S_T0}, v{V_T+3}")
I(f"s_lshl_b32 s{S_T0}, s{S_MT}, 6")
I(f"s_lshl_b32 s{S_T1}, s{S_NS}, 4")
I(f"s_add_u32 s{S_T0}, s{S_T0}, s{S_T1}")
I(f"s_lshl_b32 s{S_T1}, s{S_W}, 2")
I(f"s_add_u32 s{S_T0}, s{S_T0}, s{S_T1}")
I(f"s_lshl_b32 s{S_T0}, s{S_T0}, 2")
I(f"s_add_u32 s{S_T2}, s{S_T0}, {4096*4*4}")
I(f"v_mov_b32 v{V_T+4}, 0")
I(f"s_mov_b32 s{S_Q}, 0")
L("L_pnn")
I(f"ds_read_b128 v[{PQ}:{PQ+3}], v{V_T+3}")
I(f"ds_read_b128 v[{PQ+4}:{PQ+7}], v{V_T+3} offset:16")
for r in range(4): I(f"v_mov_b32 v{V_PA+r}, 0")
I(f"v_add_u32 v{V_T+3}, 512, v{V_T+3}")
I("s_waitcnt lgkmcnt(0)")
for t in range(7):
    I(f"v_xor_b32 v{V_T+5}, v{PQ+t}, v{V_G16}")
    I(f"v_xor_b32 v{V_T+6}, v{PQ+t}, v{V_G16B}")
    e0 = efrag(t,0); e1 = efrag(t,1)
    I(f"ds_read_b128 a[{e0}:{e0+3}], v{V_T+5}")
    I(f"ds_read_b128 a[{e1}:{e1+3}], v{V_T+6}")
I("s_waitcnt lgkmcnt(0)")
LAG = 3
for p in range(28 + LAG):
    if p < 28:
        t1,t2 = pairs[p]; d = V_D + (p%4)*4
        a0,b0 = efrag(t1,0), efrag(t2,0); a1,b1 = efrag(t1,1), efrag(t2,1)
        I(f"v_mfma_f32_16x16x32_bf16 v[{d}:{d+3}], a[{a0}:{a0+3}], a[{b0}:{b0+3}], 0")
        I(f"v_mfma_f32_16x16x32_bf16 v[{d}:{d+3}], a[{a1}:{a1+3}], a[{b1}:{b1+3}], v[{d}:{d+3}]")
    else:
        I("s_nop 3")
    pp = p - LAG
    if pp >= 0:
        d = V_D + (pp%4)*4
        for r in range(4):
            I(f"v_fmac_f32 v{V_PA+r}, v{d+r}, v{wq(pp,r)}")
def dpp_add(v, mod):
    I("s_nop 1")
    I(f"v_add_f32_dpp v{v}, v{v}, v{v} {mod}")
I(f"v_add_f32 v{V_PA}, v{V_PA}, v{V_PA+1}")
I(f"v_add_f32 v{V_PA+2}, v{V_PA+2}, v{V_PA+3}")
I(f"v_add_f32 v{V_PA}, v{V_PA}, v{V_PA+2}")
for sh in (1,2,4,8): dpp_add(V_PA, f"row_shr:{sh} row_mask:0xf bank_mask:0xf bound_ctrl:0")
dpp_add(V_PA, "row_bcast:15 row_mask:0xa bank_mask:0xf")
dpp_add(V_PA, "row_bcast:31 row_mask:0xc bank_mask:0xf")
I(f"s_mov_b32 exec_lo, 0")
I(f"s_mov_b32 exec_hi, 0x80000000")
I(f"buffer_store_dword v{V_PA}, v{V_T+4}, s[{R_WS}:{R_WS+3}], s{S_T2} offen sc1")
I(f"s_mov_b64 exec, -1")
I(f"s_add_u32 s{S_T2}, s{S_T2}, 4")
I(f"s_add_u32 s{S_Q}, s{S_Q}, 1")
I(f"s_cmp_lt_u32 s{S_Q}, 4")
I("s_cbranch_scc1 L_pnn")

def af(f, t, s): return A_AF + (f%2)*32 + (t*2+s)*4
def bf(f, s, j): return V_BF + (f%2)*32 + (s*4+j)*4
def acc(t, j): return A_ACC + (t*4+j)*4
V_MT = V_T+3
def aq(f): return PQ + (f%2)*4
def a_reads(f):
    r = []
    for t in range(4):
        ta = V_D + t*2
        r.append(f"v_xor_b32 v{ta}, v{aq(f)+t}, v{V_G16}")
        r.append(f"v_xor_b32 v{ta+1}, v{aq(f)+t}, v{V_G16B}")
        e0 = af(f,t,0); e1 = af(f,t,1)
        r.append(f"ds_read_b128 a[{e0}:{e0+3}], v{ta}")
        r.append(f"ds_read_b128 a[{e1}:{e1+3}], v{ta+1}")
    return r
V_Y = 208
def perms(f):
    r = []
    rb = f % 2
    for s in range(2):
        for c in range(8):
            for m in range(2):
                lo = V_BR + rb*32 + (s*4+2*m)*4 + (c>>1)
                hi = V_BR + rb*32 + (s*4+2*m+1)*4 + (c>>1)
                sel = S_SELLO if (c&1)==0 else S_SELHI
                dst = bf(f,s,c)+m if c < 4 else V_Y + (c-4)*2 + m
                r.append(f"v_perm_b32 v{dst}, v{hi}, v{lo}, s{sel}")
        for j in range(4):
            for m in range(2):
                r.append(f"v_mov_b32_dpp v{bf(f,s,j)+2+m}, v{bf(f,s,j)+m} row_shl:4 row_mask:0xf bank_mask:0x5")
        for j in range(4):
            for m in range(2):
                r.append(f"v_mov_b32_dpp v{bf(f,s,j)+2+m}, v{V_Y+j*2+m} quad_perm:[0,1,2,3] row_mask:0xf bank_mask:0xa")
        for j in range(4):
            for m in range(2):
                r.append(f"v_mov_b32_dpp v{bf(f,s,j)+m}, v{V_Y+j*2+m} row_shr:4 row_mask:0xf bank_mask:0xa")
    return r
S_BL = 88
def bload_list(f, rel):
    r = []
    rb = f % 2
    for s in range(2):
        r.append(f"s_add_u32 s{S_T3}, s{S_BL}, {rel*32768 + s*16384}")
        for rr in range(4):
            d = V_BR + rb*32 + (s*4+rr)*4
            r.append(f"buffer_load_dwordx4 v[{d}:{d+3}], v{V_BADDR}, s[{R_W1}:{R_W1+3}], s{S_T3} offen offset:{rr*512}")
    return r
def mfmas(f):
    mf = []
    for s in range(2):
        for t in range(4):
            for j in range(4):
                a = af(f,t,s); b = bf(f,s,j); c = acc(t,j)
                mf.append(f"v_mfma_f32_16x16x32_bf16 a[{c}:{c+3}], a[{a}:{a+3}], v[{b}:{b+3}], a[{c}:{c+3}]")
    return mf
I(f"s_mul_i32 s{S_T0}, s{S_W}, 6400")
I(f"s_add_u32 s{S_T0}, s{S_T0}, {LDS_MT}")
I(f"v_lshlrev_b32 v{V_MT}, 4, v{V_I}")
I(f"v_add_u32 v{V_MT}, s{S_T0}, v{V_MT}")
I(f"ds_read_b128 v[{aq(0)}:{aq(0)+3}], v{V_MT}")
I(f"ds_read_b128 v[{aq(1)}:{aq(1)+3}], v{V_MT} offset:256")
for k in range(64): I(f"v_accvgpr_write_b32 a{A_ACC+k}, 0")
I("s_waitcnt lgkmcnt(0)")
for x in a_reads(0): I(x)
I("s_waitcnt vmcnt(12)")
for x in perms(0): I(x)
I(f"s_add_u32 s{S_BL}, s{S_BOFF}, {2*32768}")
for x in bload_list(2, 0): I(x)
I(f"s_add_u32 s{S_BL}, s{S_BOFF}, {3*32768}")
I(f"s_mov_b32 s{S_Q}, 0")
I("s_waitcnt lgkmcnt(0)")
def body(f):
    side = [f"ds_read_b128 v[{aq(f)}:{aq(f)+3}], v{V_MT} offset:{(2+f)*256}"]
    side = a_reads(f+1) + side
    side.append("s_waitcnt vmcnt(8)")
    side += perms(f+1)
    side += bload_list(f+3, f)
    k = 0
    for m in mfmas(f):
        I(m)
        for _ in range(3):
            if k < len(side): I(side[k]); k += 1
    while k < len(side): I(side[k]); k += 1
    I("s_waitcnt lgkmcnt(0)")
L("L_mlp")
I(f"s_cmp_eq_u32 s{S_Q}, 11")
I(f"s_cselect_b32 s{S_BL}, 0x40000000, s{S_BL}")
body(0)
body(1)
I(f"v_add_u32 v{V_MT}, 512, v{V_MT}")
I(f"s_add_u32 s{S_BL}, s{S_BL}, 65536")
I(f"s_add_u32 s{S_Q}, s{S_Q}, 1")
I(f"s_cmp_lt_u32 s{S_Q}, 12")
I("s_cbranch_scc1 L_mlp")
for m in mfmas(0): I(m)

I("s_nop 7"); I("s_nop 7")
I("s_barrier")
I(f"v_lshlrev_b32 v{V_T}, 4, v{V_L}")
I(f"s_lshl_b32 s{S_T0}, s{S_W}, 14")
I(f"v_add_u32 v{V_T+1}, s{S_T0}, v{V_T}")
for t in range(4):
    for j in range(4):
        c = acc(t,j)
        I(f"ds_write_b128 v{V_T+1}, a[{c}:{c+3}] offset:{(t*4+j)*1024}")
I("s_waitcnt lgkmcnt(0)")
I("s_barrier")
I(f"s_lshl_b32 s{S_T0}, s{S_W}, 12")
I(f"v_add_u32 v{V_T+1}, s{S_T0}, v{V_T}")
VZ = 32
for wp in range(4):
    for j in range(4):
        d = VZ + (wp*4+j)*4
        I(f"ds_read_b128 v[{d}:{d+3}], v{V_T+1} offset:{wp*16384+j*1024}")
VB, VW = 96, 100
I(f"v_lshlrev_b32 v{VB}, 16, v{V_B1}")
I(f"v_and_b32 v{VB+1}, 0xffff0000, v{V_B1}")
I(f"v_lshlrev_b32 v{VB+2}, 16, v{V_B1+1}")
I(f"v_and_b32 v{VB+3}, 0xffff0000, v{V_B1+1}")
I(f"v_lshlrev_b32 v{VW}, 16, v{V_W2}")
I(f"v_and_b32 v{VW+1}, 0xffff0000, v{V_W2}")
I(f"v_lshlrev_b32 v{VW+2}, 16, v{V_W2+1}")
I(f"v_and_b32 v{VW+3}, 0xffff0000, v{V_W2+1}")
I(f"v_mov_b32 v{V_T+2}, s{S_C1}")
I("s_waitcnt lgkmcnt(0)")
VP = 104
VT2 = 108
for j in range(4):
    for r in range(4):
        z = VZ + j*4 + r
        I(f"v_add_f32 v{z}, v{z}, v{VZ+(4+j)*4+r}")
        I(f"v_add_f32 v{VT2+r}, v{VZ+(8+j)*4+r}, v{VZ+(12+j)*4+r}")
        I(f"v_add_f32 v{z}, v{z}, v{VB+j}")
        I(f"v_add_f32 v{z}, v{z}, v{VT2+r}")
    for r in range(4):
        z = VZ + j*4 + r
        I(f"v_mul_f32 v{VT2+r}, v{z}, v{z}")
        I(f"v_fma_f32 v{VT2+r}, v{VT2+r}, s{S_C2}, v{V_T+2}")
        I(f"v_mul_f32 v{VT2+r}, v{VT2+r}, v{z}")
    for r in range(4): I(f"v_exp_f32 v{VT2+r}, v{VT2+r}")
    for r in range(4): I(f"v_add_f32 v{VT2+r}, 1.0, v{VT2+r}")
    for r in range(4): I(f"v_rcp_f32 v{VT2+r}, v{VT2+r}")
    for r in range(4):
        z = VZ + j*4 + r
        I(f"v_mul_f32 v{z}, v{z}, v{VT2+r}")
    for r in range(4):
        z = VZ + j*4 + r
        if j == 0: I(f"v_mul_f32 v{VP+r}, v{z}, v{VW+j}")
        else: I(f"v_fmac_f32 v{VP+r}, v{z}, v{VW+j}")
for sh in (1,2,4,8):
    for r in range(4): dpp_add(VP+r, f"row_shr:{sh} row_mask:0xf bank_mask:0xf bound_ctrl:0")
I(f"s_lshl_b32 s{S_T0}, s2, 8")
I(f"s_lshl_b32 s{S_T1}, s{S_W}, 6")
I(f"s_add_u32 s{S_T0}, s{S_T0}, s{S_T1}")
I(f"v_lshlrev_b32 v{V_T+3}, 4, v{V_G}")
I(f"s_mov_b64 s[{S_EX}:{S_EX+1}], exec")
I(f"s_mov_b32 exec_lo, 0x80008000")
I(f"s_mov_b32 exec_hi, 0x80008000")
I(f"buffer_store_dwordx4 v[{VP}:{VP+3}], v{V_T+3}, s[{R_WS}:{R_WS+3}], s{S_T0} offen sc1")
I(f"s_mov_b64 exec, s[{S_EX}:{S_EX+1}]")
I("s_waitcnt vmcnt(0)")
I("s_barrier")
I(f"s_cmp_lg_u32 s{S_W}, 0")
I("s_cbranch_scc1 L_end")
I(f"s_lshl_b32 s{S_T0}, s{S_MT}, 2")
I(f"v_mov_b32 v{V_T+4}, 1")
I(f"v_mov_b32 v{V_T+5}, 0")
I(f"s_mov_b64 exec, 1")
I(f"buffer_atomic_add v{V_T+4}, v{V_T+5}, s[{R_DBG}:{R_DBG+3}], s{S_T0} offen sc0")
I("s_waitcnt vmcnt(0)")
I(f"s_mov_b64 exec, -1")
I(f"v_readfirstlane_b32 s{S_T1}, v{V_T+4}")
I("s_nop 3")
I(f"s_cmp_lg_u32 s{S_T1}, 3")
I("s_cbranch_scc1 L_end")
I(f"s_lshl_b32 s{S_T0}, s{S_MT}, 10")
I(f"v_lshlrev_b32 v{V_T+5}, 2, v{V_L}")
for sl in range(4):
    I(f"buffer_load_dword v{V_T+6+sl}, v{V_T+5}, s[{R_WS}:{R_WS+3}], s{S_T0} offen offset:{sl*256} sc1")
I(f"s_lshl_b32 s{S_T1}, s{S_MT}, 8")
I(f"s_add_u32 s{S_T1}, s{S_T1}, {4096*4*4}")
I(f"buffer_load_dword v{V_T+10}, v{V_T+5}, s[{R_WS}:{R_WS+3}], s{S_T1} offen sc1")
I(f"v_lshlrev_b32 v{V_B2}, 16, v{V_B2}")
I("s_waitcnt vmcnt(0)")
I(f"v_add_f32 v{V_T+6}, v{V_T+6}, v{V_T+7}")
I(f"v_add_f32 v{V_T+8}, v{V_T+8}, v{V_T+9}")
I(f"v_add_f32 v{V_T+6}, v{V_T+6}, v{V_T+8}")
I(f"v_add_f32 v{V_T+6}, v{V_T+6}, v{V_B2}")
I(f"v_add_f32 v{V_T+6}, v{V_T+6}, v{V_T+10}")
I(f"v_cvt_pk_bf16_f32 v{V_T+6}, v{V_T+6}, v{V_T+6}")
I(f"s_lshl_b32 s{S_T0}, s{S_MT}, 7")
I(f"v_lshlrev_b32 v{V_T+5}, 1, v{V_L}")
I(f"buffer_store_short v{V_T+6}, v{V_T+5}, s[{R_OUT}:{R_OUT+3}], s{S_T0} offen")
L("L_end")

txt = "\n".join(hdr) + "\n; @launch grid=(256,1,1) block=(256,1,1) lds=161792\n"
txt += f""".amdgcn_target "amdgcn-amd-amdhsa--gfx950"
.text
.globl {NAME}
.p2align 8
.type {NAME},@function
{NAME}:
""" + "\n".join(out) + f"""
s_endpgm
.section .rodata,"a"
.p2align 6
.amdhsa_kernel {NAME}
  .amdhsa_next_free_vgpr 512
  .amdhsa_next_free_sgpr 102
  .amdhsa_accum_offset 256
  .amdhsa_group_segment_fixed_size 0
  .amdhsa_kernarg_size 80
  .amdhsa_user_sgpr_count 2
  .amdhsa_user_sgpr_kernarg_segment_ptr 1
  .amdhsa_system_sgpr_workgroup_id_x 1
.end_amdhsa_kernel
"""
open(sys.argv[1] if len(sys.argv) > 1 else 'standalone__deep_cross_pnn__recsys.s', 'w').write(txt)
```

```python
import sys
out = []
def I(s): out.append("    " + s)
def L(s): out.append(s + ":")

HDR = open('standalone__deep_cross_pnn__recsys.s.ref').read().split('\n')
hdr = [l for l in HDR if l.startswith(';') and not l.startswith('; @launch')]
NAME = "standalone__deep_cross_pnn__recsys_kernel"

S_MT, S_NS, S_W = 3, 4, 5
P_IDX, P_TAB, P_WP, P_W1, P_B1, P_W2, P_B2, P_OUT, P_DBG, P_WS = 16,18,20,22,24,26,28,30,32,34
R_IDX, R_TAB, R_WP, R_W1, R_B1, R_W2, R_WS, R_DBG, R_OUT, R_B2 = 36,40,44,48,52,56,60,64,68,72
S_SELLO, S_SELHI = 76, 77
S_T0, S_T1, S_T2, S_T3 = 78, 79, 80, 81
S_C1, S_C2 = 82, 83
S_EX = 84
S_BOFF = 86
V_L, V_I, V_G, V_G16 = 1, 2, 3, 4
V_BADDR = 5
V_T = 6
V_D = 16
V_WQ = 32
V_BF = 32
V_BR = 64
V_IX = 32
V_M = 152
V_PA = 152
V_B1 = 156
V_W2 = 158
V_B2 = 18
A_ACC = 0
A_AF = 64
A_AD = 128
A_PI = 228
A_E = 0
A_W1R = 0

def srd(r, p, size):
    I(f"s_mov_b32 s{r}, s{p}")
    I(f"s_and_b32 s{r+1}, s{p+1}, 0xffff")
    I(f"s_mov_b32 s{r+2}, {size}")
    I(f"s_mov_b32 s{r+3}, 0x00020000")

pairs = [(t1,t2) for t1 in range(7) for t2 in range(t1,7)]
def wq(p, r): return V_WQ + p*4 + r

I("s_cmp_ge_u32 s2, 256")
I("s_cbranch_scc1 L_end")
I("s_load_dwordx16 s[16:31], s[0:1], 0")
I("s_load_dwordx4 s[32:35], s[0:1], 64")
I(f"s_lshr_b32 s{S_MT}, s2, 2")
I(f"s_and_b32 s{S_NS}, s2, 3")
I(f"v_lshrrev_b32 v{V_T}, 6, v0")
I(f"v_and_b32 v{V_L}, 63, v0")
I(f"v_readfirstlane_b32 s{S_W}, v{V_T}")
I(f"v_and_b32 v{V_I}, 15, v0")
I(f"v_bfe_u32 v{V_G}, v0, 4, 2")
I(f"v_lshlrev_b32 v{V_G16}, 4, v{V_G}")
I(f"s_mov_b32 s{S_SELLO}, 0x05040100")
I(f"s_mov_b32 s{S_SELHI}, 0x07060302")
I(f"s_mov_b32 s{S_C1}, 0xc0135761")
I(f"s_mov_b32 s{S_C2}, 0xbdd2d3e8")
I("s_waitcnt lgkmcnt(0)")
srd(R_IDX, P_IDX, 4096*400)
srd(R_TAB, P_TAB, 128000)
srd(R_WP, P_WP, 20000)
srd(R_W1, P_W1, 6400*512)
srd(R_B1, P_B1, 512)
srd(R_W2, P_W2, 512)
srd(R_B2, P_B2, 2)
srd(R_WS, P_WS, 4096*5*4)
srd(R_DBG, P_DBG, 256)
srd(R_OUT, P_OUT, 8192)

LDS_MT = 128000
LDS_PT = 128000 + 26624
S_FS, S_FC = 89, 90
I(f"s_mul_i32 s{S_FS}, s{S_W}, 13")
I(f"s_mul_i32 s{S_T1}, s{S_W}, 12")
I(f"s_add_u32 s{S_T1}, s{S_T1}, 4")
I(f"s_cmp_lt_u32 s{S_W}, 4")
I(f"s_cselect_b32 s{S_FS}, s{S_FS}, s{S_T1}")
I(f"s_cselect_b32 s{S_FC}, 13, 12")
I(f"s_mul_i32 s{S_T0}, s{S_MT}, 25600")
I(f"s_lshl_b32 s{S_T1}, s{S_FS}, 2")
I(f"s_add_u32 s{S_T0}, s{S_T0}, s{S_T1}")
I(f"v_mul_u32_u24 v{V_T}, 400, v{V_L}")
for e in range(3):
    r = V_IX + e*4
    I(f"buffer_load_dwordx4 v[{r}:{r+3}], v{V_T}, s[{R_IDX}:{R_IDX+3}], s{S_T0} offen offset:{e*16}")
I(f"buffer_load_dword v{V_IX+12}, v{V_T}, s[{R_IDX}:{R_IDX+3}], s{S_T0} offen offset:48")
I(f"s_lshl_b32 s{S_T0}, s{S_MT}, 6")
I(f"s_lshl_b32 s{S_T1}, s{S_NS}, 4")
I(f"s_add_u32 s{S_T0}, s{S_T0}, s{S_T1}")
I(f"s_lshl_b32 s{S_T1}, s{S_W}, 1")
I(f"s_add_u32 s{S_T0}, s{S_T0}, s{S_T1}")
I(f"s_mul_i32 s{S_T0}, s{S_T0}, 400")
I(f"v_lshlrev_b32 v{V_T+1}, 2, v{V_L}")
I(f"v_add_u32 v{V_T+2}, 64, v{V_L}")
I(f"v_min_u32 v{V_T+2}, 99, v{V_T+2}")
I(f"v_lshlrev_b32 v{V_T+2}, 2, v{V_T+2}")
for q in range(2):
    I(f"buffer_load_dword v{V_IX+14+2*q}, v{V_T+1}, s[{R_IDX}:{R_IDX+3}], s{S_T0} offen offset:{q*400}")
    I(f"buffer_load_dword v{V_IX+15+2*q}, v{V_T+2}, s[{R_IDX}:{R_IDX+3}], s{S_T0} offen offset:{q*400}")
I(f"s_and_b32 s{S_T1}, s{S_W}, 1")
I(f"s_lshl_b32 s{S_T1}, s{S_T1}, 2")
I(f"v_lshrrev_b32 v{V_T+3}, 4, v{V_L}")
I(f"v_add_u32 v{V_T+3}, s{S_T1}, v{V_T+3}")
I(f"v_and_b32 v{V_T+4}, 7, v{V_L}")
I(f"v_xor_b32 v{V_T+4}, v{V_T+4}, v{V_T+3}")
I(f"v_lshlrev_b32 v{V_T+4}, 4, v{V_T+4}")
I(f"v_lshrrev_b32 v{V_T+3}, 3, v{V_L}")
I(f"v_lshl_or_b32 v{V_T+4}, v{V_T+3}, 7, v{V_T+4}")
I(f"s_lshl_b32 s{S_T2}, s{S_W}, 10")
L("L_dma")
I(f"s_mov_b32 m0, s{S_T2}")
I(f"s_add_u32 s{S_T3}, s{S_T2}, 8192")
I(f"buffer_load_dwordx4 v{V_T+4}, s[{R_TAB}:{R_TAB+3}], s{S_T2} offen lds")
I(f"s_mov_b32 s{S_T2}, s{S_T3}")
I(f"s_cmp_lt_u32 s{S_T2}, 128000")
I("s_cbranch_scc1 L_dma")
I("s_waitcnt vmcnt(15)")
def base_calc(src):
    I(f"v_bfe_u32 v{V_T+10}, v{src}, 1, 3")
    I(f"v_lshlrev_b32 v{src}, 7, v{src}")
    I(f"v_lshl_or_b32 v{src}, v{V_T+10}, 4, v{src}")
I(f"s_mul_i32 s{S_T0}, s{S_W}, 3328")
I(f"s_add_u32 s{S_T0}, s{S_T0}, {LDS_MT}")
I(f"v_lshlrev_b32 v{V_T+3}, 4, v{V_I}")
I(f"v_lshl_add_u32 v{V_T+3}, v{V_G}, 2, v{V_T+3}")
I(f"v_add_u32 v{V_T+3}, s{S_T0}, v{V_T+3}")
for f in range(13):
    base_calc(V_IX+f)
    I(f"ds_write_b32 v{V_T+3}, v{V_IX+f} offset:{f*256}")
I(f"s_lshl_b32 s{S_T0}, s{S_W}, 10")
I(f"s_add_u32 s{S_T0}, s{S_T0}, {LDS_PT}")
I(f"v_lshlrev_b32 v{V_T+3}, 5, v{V_I}")
I(f"v_lshl_add_u32 v{V_T+3}, v{V_G}, 2, v{V_T+3}")
I(f"v_add_u32 v{V_T+3}, s{S_T0}, v{V_T+3}")
for q in range(2):
    base_calc(V_IX+14+2*q); base_calc(V_IX+15+2*q)
    I(f"ds_write_b32 v{V_T+3}, v{V_IX+14+2*q} offset:{q*512}")
    I(f"ds_write_b32 v{V_T+3}, v{V_IX+15+2*q} offset:{q*512+16}")
I("s_waitcnt lgkmcnt(0)")
BIG = 0x7ffffff0
I(f"v_mul_u32_u24 v{V_T+5}, 200, v{V_I}")
I(f"v_lshl_add_u32 v{V_T+5}, v{V_G}, 3, v{V_T+5}")
I(f"v_mov_b32 v{V_T+9}, {BIG}")
I(f"v_cmp_gt_u32 vcc, 4, v{V_I}")
I(f"s_nop 1")
I(f"v_cndmask_b32 v{V_T+6}, v{V_T+9}, v{V_T+5}, vcc")
I(f"v_cmp_eq_u32 vcc, 0, v{V_G}")
I(f"s_nop 1")
I(f"v_cndmask_b32 v{V_T+7}, v{V_T+9}, v{V_T+6}, vcc")
I(f"v_mul_u32_u24 v{V_T+8}, 800, v{V_G}")
I(f"v_lshl_add_u32 v{V_T+8}, v{V_I}, 1, v{V_T+8}")
I(f"v_cmp_gt_u32 vcc, 4, v{V_I}")
I(f"s_nop 1")
I(f"v_cndmask_b32 v{V_T+9}, v{V_T+9}, v{V_T+8}, vcc")
for p,(t1,t2) in enumerate(pairs):
    va = V_T+5 if t2 < 6 else (V_T+6 if t1 < 6 else V_T+7)
    I(f"s_mov_b32 s{S_T1}, {t2*3200}")
    I(f"buffer_load_dwordx2 a[{A_W1R+2*p}:{A_W1R+2*p+1}], v{va}, s[{R_WP}:{R_WP+3}], s{S_T1} offen offset:{t1*32}")
    if t1 < t2:
        va = V_T+8 if t2 < 6 else V_T+9
        I(f"s_mov_b32 s{S_T1}, {t1*3200}")
        for r in range(4):
            I(f"buffer_load_ushort v{wq(p,r)}, v{va}, s[{R_WP}:{R_WP+3}], s{S_T1} offen offset:{r*200+t2*32}")
I(f"s_lshl_b32 s{S_T1}, s{S_NS}, 7")
I(f"v_and_b32 v13, 3, v{V_I}")
I(f"v_lshrrev_b32 v14, 3, v{V_I}")
I(f"v_lshl_add_u32 v13, v14, 2, v13")
I(f"v_bfe_u32 v14, v{V_I}, 2, 1")
I(f"v_lshlrev_b32 v{V_T+5}, 4, v13")
I(f"v_lshl_add_u32 v{V_T+5}, v14, 3, v{V_T+5}")
I(f"buffer_load_dwordx2 v[{V_B1}:{V_B1+1}], v{V_T+5}, s[{R_B1}:{R_B1+3}], s{S_T1} offen")
I(f"buffer_load_dwordx2 v[{V_W2}:{V_W2+1}], v{V_T+5}, s[{R_W2}:{R_W2+3}], s{S_T1} offen")

I(f"v_lshlrev_b32 v{V_BADDR}, 12, v{V_G}")
I(f"v_lshl_add_u32 v{V_BADDR}, v13, 4, v{V_BADDR}")
I(f"v_lshl_add_u32 v{V_BADDR}, v14, 11, v{V_BADDR}")
I(f"s_lshl_b32 s{S_T1}, s{S_NS}, 7")
I(f"v_add_u32 v{V_BADDR}, s{S_T1}, v{V_BADDR}")
I(f"s_lshl_b32 s{S_BOFF}, s{S_FS}, 15")
def bload(f):
    rb = f % 2
    for s in range(2):
        I(f"s_add_u32 s{S_T3}, s{S_BOFF}, {f*32768 + s*16384}")
        for r in range(4):
            d = V_BR + rb*32 + (s*4+r)*4
            I(f"buffer_load_dwordx4 v[{d}:{d+3}], v{V_BADDR}, s[{R_W1}:{R_W1+3}], s{S_T3} offen offset:{r*512}")
I("s_waitcnt vmcnt(0) lgkmcnt(0)")
I("s_barrier")
for p,(t1,t2) in enumerate(pairs):
    a0, a1 = V_T+10, V_T+11
    I(f"v_accvgpr_read_b32 v{a0}, a{A_W1R+2*p}")
    I(f"v_accvgpr_read_b32 v{a1}, a{A_W1R+2*p+1}")
    if t1 < t2:
        for r in range(4):
            I(f"v_lshlrev_b32 v{wq(p,r)}, 16, v{wq(p,r)}")
        I(f"v_lshlrev_b32 v{V_T+12}, 16, v{a0}")
        I(f"v_and_b32 v{V_T+13}, 0xffff0000, v{a0}")
        I(f"v_lshlrev_b32 v{V_T+14}, 16, v{a1}")
        I(f"v_and_b32 v{V_T+15}, 0xffff0000, v{a1}")
        for r in range(4):
            I(f"v_add_f32 v{wq(p,r)}, v{wq(p,r)}, v{V_T+12+r}")
    else:
        I(f"v_lshlrev_b32 v{wq(p,0)}, 16, v{a0}")
        I(f"v_and_b32 v{wq(p,1)}, 0xffff0000, v{a0}")
        I(f"v_lshlrev_b32 v{wq(p,2)}, 16, v{a1}")
        I(f"v_and_b32 v{wq(p,3)}, 0xffff0000, v{a1}")

V_G16B = 15
I(f"v_xor_b32 v{V_G16B}, 64, v{V_G16}")
def efrag(t, s): return A_E + (t*2+s)*4
PQ = 144
S_Q = 87
I(f"s_lshl_b32 s{S_T0}, s{S_W}, 10")
I(f"s_add_u32 s{S_T0}, s{S_T0}, {LDS_PT}")
I(f"v_lshlrev_b32 v{V_T+3}, 5, v{V_I}")
I(f"v_add_u32 v{V_T+3}, s{S_T0}, v{V_T+3}")
I(f"s_lshl_b32 s{S_T0}, s{S_MT}, 6")
I(f"s_lshl_b32 s{S_T1}, s{S_NS}, 4")
I(f"s_add_u32 s{S_T0}, s{S_T0}, s{S_T1}")
I(f"s_lshl_b32 s{S_T1}, s{S_W}, 1")
I(f"s_add_u32 s{S_T0}, s{S_T0}, s{S_T1}")
I(f"s_lshl_b32 s{S_T0}, s{S_T0}, 2")
I(f"s_add_u32 s{S_T2}, s{S_T0}, {4096*4*4}")
I(f"v_mov_b32 v{V_T+4}, 0")
I(f"s_mov_b32 s{S_Q}, 0")
L("L_pnn")
I(f"ds_read_b128 v[{PQ}:{PQ+3}], v{V_T+3}")
I(f"ds_read_b128 v[{PQ+4}:{PQ+7}], v{V_T+3} offset:16")
for r in range(4): I(f"v_mov_b32 v{V_PA+r}, 0")
I(f"v_add_u32 v{V_T+3}, 512, v{V_T+3}")
I("s_waitcnt lgkmcnt(0)")
for t in range(7):
    I(f"v_xor_b32 v{V_T+5}, v{PQ+t}, v{V_G16}")
    I(f"v_xor_b32 v{V_T+6}, v{PQ+t}, v{V_G16B}")
    e0 = efrag(t,0); e1 = efrag(t,1)
    I(f"ds_read_b128 a[{e0}:{e0+3}], v{V_T+5}")
    I(f"ds_read_b128 a[{e1}:{e1+3}], v{V_T+6}")
I("s_waitcnt lgkmcnt(0)")
LAG = 3
for p in range(28 + LAG):
    if p < 28:
        t1,t2 = pairs[p]; d = V_D + (p%4)*4
        a0,b0 = efrag(t1,0), efrag(t2,0); a1,b1 = efrag(t1,1), efrag(t2,1)
        I(f"v_mfma_f32_16x16x32_bf16 v[{d}:{d+3}], a[{a0}:{a0+3}], a[{b0}:{b0+3}], 0")
        I(f"v_mfma_f32_16x16x32_bf16 v[{d}:{d+3}], a[{a1}:{a1+3}], a[{b1}:{b1+3}], v[{d}:{d+3}]")
    else:
        I("s_nop 3")
    pp = p - LAG
    if pp >= 0:
        d = V_D + (pp%4)*4
        for r in range(4):
            I(f"v_fmac_f32 v{V_PA+r}, v{d+r}, v{wq(pp,r)}")
def dpp_add(v, mod):
    I("s_nop 1")
    I(f"v_add_f32_dpp v{v}, v{v}, v{v} {mod}")
I(f"v_add_f32 v{V_PA}, v{V_PA}, v{V_PA+1}")
I(f"v_add_f32 v{V_PA+2}, v{V_PA+2}, v{V_PA+3}")
I(f"v_add_f32 v{V_PA}, v{V_PA}, v{V_PA+2}")
for sh in (1,2,4,8): dpp_add(V_PA, f"row_shr:{sh} row_mask:0xf bank_mask:0xf bound_ctrl:0")
dpp_add(V_PA, "row_bcast:15 row_mask:0xa bank_mask:0xf")
dpp_add(V_PA, "row_bcast:31 row_mask:0xc bank_mask:0xf")
I(f"s_mov_b32 exec_lo, 0")
I(f"s_mov_b32 exec_hi, 0x80000000")
I(f"buffer_store_dword v{V_PA}, v{V_T+4}, s[{R_WS}:{R_WS+3}], s{S_T2} offen sc1")
I(f"s_mov_b64 exec, -1")
I(f"s_add_u32 s{S_T2}, s{S_T2}, 4")
I(f"s_add_u32 s{S_Q}, s{S_Q}, 1")
I(f"s_cmp_lt_u32 s{S_Q}, 2")
I("s_cbranch_scc1 L_pnn")

def af(f, t, s): return A_AF + (t*2+s)*4
def bf(f, s, j): return V_BF + (s*4+j)*4
def acc(t, j): return A_ACC + (t*4+j)*4
V_MT = V_T+3
def aq(f): return PQ + (f%2)*4
def a_reads(f):
    r = []
    for t in range(4):
        ta = V_D + t*2
        r.append(f"v_xor_b32 v{ta}, v{aq(f)+t}, v{V_G16}")
        r.append(f"v_xor_b32 v{ta+1}, v{aq(f)+t}, v{V_G16B}")
        e0 = af(f,t,0); e1 = af(f,t,1)
        r.append(f"ds_read_b128 a[{e0}:{e0+3}], v{ta}")
        r.append(f"ds_read_b128 a[{e1}:{e1+3}], v{ta+1}")
    return r
V_Y = 128
def perms(f):
    r = []
    rb = f % 2
    for s in range(2):
        for c in range(8):
            for m in range(2):
                lo = V_BR + rb*32 + (s*4+2*m)*4 + (c>>1)
                hi = V_BR + rb*32 + (s*4+2*m+1)*4 + (c>>1)
                sel = S_SELLO if (c&1)==0 else S_SELHI
                dst = bf(f,s,c)+m if c < 4 else V_Y + (c-4)*2 + m
                r.append(f"v_perm_b32 v{dst}, v{hi}, v{lo}, s{sel}")
        for j in range(4):
            for m in range(2):
                r.append(f"v_mov_b32_dpp v{bf(f,s,j)+2+m}, v{bf(f,s,j)+m} row_shl:4 row_mask:0xf bank_mask:0x5")
        for j in range(4):
            for m in range(2):
                r.append(f"v_mov_b32_dpp v{bf(f,s,j)+2+m}, v{V_Y+j*2+m} quad_perm:[0,1,2,3] row_mask:0xf bank_mask:0xa")
        for j in range(4):
            for m in range(2):
                r.append(f"v_mov_b32_dpp v{bf(f,s,j)+m}, v{V_Y+j*2+m} row_shr:4 row_mask:0xf bank_mask:0xa")
    return r
S_BL = 88
def bload_list(f, rel):
    r = []
    rb = f % 2
    for s in range(2):
        r.append(f"s_add_u32 s{S_T3}, s{S_BL}, {rel*32768 + s*16384}")
        for rr in range(4):
            d = V_BR + rb*32 + (s*4+rr)*4
            r.append(f"buffer_load_dwordx4 v[{d}:{d+3}], v{V_BADDR}, s[{R_W1}:{R_W1+3}], s{S_T3} offen offset:{rr*512}")
    return r
def mfmas(f):
    mf = []
    for s in range(2):
        for t in range(4):
            for j in range(4):
                a = af(f,t,s); b = bf(f,s,j); c = acc(t,j)
                mf.append(f"v_mfma_f32_16x16x32_bf16 a[{c}:{c+3}], a[{a}:{a+3}], v[{b}:{b+3}], a[{c}:{c+3}]")
    return mf
I(f"s_mul_i32 s{S_T0}, s{S_W}, 3328")
I(f"s_add_u32 s{S_T0}, s{S_T0}, {LDS_MT}")
I(f"v_lshlrev_b32 v{V_MT}, 4, v{V_I}")
I(f"v_add_u32 v{V_MT}, s{S_T0}, v{V_MT}")
I(f"ds_read_b128 v[{aq(0)}:{aq(0)+3}], v{V_MT}")
I(f"s_mov_b32 s{S_BL}, s{S_BOFF}")
for x in bload_list(0, 0): I(x)
for x in bload_list(1, 1): I(x)
I(f"s_add_u32 s{S_BL}, s{S_BL}, 65536")
for k in range(64): I(f"v_accvgpr_write_b32 a{A_ACC+k}, 0")
I(f"s_mov_b32 s{S_Q}, 0")
def body(f):
    I("s_waitcnt lgkmcnt(0)")
    for x in a_reads(f): I(x)
    I(f"ds_read_b128 v[{aq(f+1)}:{aq(f+1)+3}], v{V_MT} offset:256")
    I(f"v_add_u32 v{V_MT}, 256, v{V_MT}")
    I(f"s_add_u32 s{S_T0}, s{S_Q}, 2")
    I(f"s_cmp_ge_u32 s{S_T0}, s{S_FC}")
    I(f"s_cselect_b32 s{S_BL}, 0x40000000, s{S_BL}")
    I("s_waitcnt vmcnt(8)")
    for x in perms(f): I(x)
    for x in bload_list(f, 0): I(x)
    I(f"s_add_u32 s{S_BL}, s{S_BL}, 32768")
    I("s_waitcnt lgkmcnt(1)")
    for m in mfmas(f): I(m)
    I(f"s_add_u32 s{S_Q}, s{S_Q}, 1")
    I(f"s_cmp_ge_u32 s{S_Q}, s{S_FC}")
L("L_mlp")
body(0)
I("s_cbranch_scc1 L_mlpd")
body(1)
I("s_cbranch_scc0 L_mlp")
L("L_mlpd")

I("s_nop 7"); I("s_nop 7")
I("s_barrier")
I(f"v_lshlrev_b32 v{V_T}, 4, v{V_L}")
I(f"s_lshl_b32 s{S_T0}, s{S_W}, 14")
I(f"v_add_u32 v{V_T+1}, s{S_T0}, v{V_T}")
for t in range(4):
    for j in range(4):
        c = acc(t,j)
        I(f"ds_write_b128 v{V_T+1}, a[{c}:{c+3}] offset:{(t*4+j)*1024}")
I("s_waitcnt lgkmcnt(0)")
I("s_barrier")
I(f"s_cmp_ge_u32 s{S_W}, 4")
I("s_cbranch_scc1 L_skip")
I(f"s_lshl_b32 s{S_T0}, s{S_W}, 12")
I(f"v_add_u32 v{V_T+1}, s{S_T0}, v{V_T}")
I(f"v_add_u32 v{V_T+3}, 0x10000, v{V_T+1}")
VZ = 32
for wp in range(4):
    for j in range(4):
        d = VZ + (wp*4+j)*4
        I(f"ds_read_b128 v[{d}:{d+3}], v{V_T+1} offset:{wp*16384+j*1024}")
I("s_waitcnt lgkmcnt(0)")
for wp in range(4):
    for j in range(4):
        I(f"ds_read_b128 v[112:115], v{V_T+3} offset:{wp*16384+j*1024}")
        I("s_waitcnt lgkmcnt(0)")
        for r in range(4): I(f"v_add_f32 v{VZ+(wp*4+j)*4+r}, v{VZ+(wp*4+j)*4+r}, v{112+r}")
VB, VW = 96, 100
I(f"v_lshlrev_b32 v{VB}, 16, v{V_B1}")
I(f"v_and_b32 v{VB+1}, 0xffff0000, v{V_B1}")
I(f"v_lshlrev_b32 v{VB+2}, 16, v{V_B1+1}")
I(f"v_and_b32 v{VB+3}, 0xffff0000, v{V_B1+1}")
I(f"v_lshlrev_b32 v{VW}, 16, v{V_W2}")
I(f"v_and_b32 v{VW+1}, 0xffff0000, v{V_W2}")
I(f"v_lshlrev_b32 v{VW+2}, 16, v{V_W2+1}")
I(f"v_and_b32 v{VW+3}, 0xffff0000, v{V_W2+1}")
I(f"v_mov_b32 v{V_T+2}, s{S_C1}")
I("s_waitcnt lgkmcnt(0)")
VP = 104
VT2 = 108
for j in range(4):
    for r in range(4):
        z = VZ + j*4 + r
        I(f"v_add_f32 v{z}, v{z}, v{VZ+(4+j)*4+r}")
        I(f"v_add_f32 v{VT2+r}, v{VZ+(8+j)*4+r}, v{VZ+(12+j)*4+r}")
        I(f"v_add_f32 v{z}, v{z}, v{VB+j}")
        I(f"v_add_f32 v{z}, v{z}, v{VT2+r}")
    for r in range(4):
        z = VZ + j*4 + r
        I(f"v_mul_f32 v{VT2+r}, v{z}, v{z}")
        I(f"v_fma_f32 v{VT2+r}, v{VT2+r}, s{S_C2}, v{V_T+2}")
        I(f"v_mul_f32 v{VT2+r}, v{VT2+r}, v{z}")
    for r in range(4): I(f"v_exp_f32 v{VT2+r}, v{VT2+r}")
    for r in range(4): I(f"v_add_f32 v{VT2+r}, 1.0, v{VT2+r}")
    for r in range(4): I(f"v_rcp_f32 v{VT2+r}, v{VT2+r}")
    for r in range(4):
        z = VZ + j*4 + r
        I(f"v_mul_f32 v{z}, v{z}, v{VT2+r}")
    for r in range(4):
        z = VZ + j*4 + r
        if j == 0: I(f"v_mul_f32 v{VP+r}, v{z}, v{VW+j}")
        else: I(f"v_fmac_f32 v{VP+r}, v{z}, v{VW+j}")
for sh in (1,2,4,8):
    for r in range(4): dpp_add(VP+r, f"row_shr:{sh} row_mask:0xf bank_mask:0xf bound_ctrl:0")
I(f"s_lshl_b32 s{S_T0}, s2, 8")
I(f"s_lshl_b32 s{S_T1}, s{S_W}, 6")
I(f"s_add_u32 s{S_T0}, s{S_T0}, s{S_T1}")
I(f"v_lshlrev_b32 v{V_T+3}, 4, v{V_G}")
I(f"s_mov_b64 s[{S_EX}:{S_EX+1}], exec")
I(f"s_mov_b32 exec_lo, 0x80008000")
I(f"s_mov_b32 exec_hi, 0x80008000")
I(f"buffer_store_dwordx4 v[{VP}:{VP+3}], v{V_T+3}, s[{R_WS}:{R_WS+3}], s{S_T0} offen sc1")
I(f"s_mov_b64 exec, s[{S_EX}:{S_EX+1}]")
L("L_skip")
I("s_waitcnt vmcnt(0)")
I("s_barrier")
I(f"s_cmp_lg_u32 s{S_W}, 0")
I("s_cbranch_scc1 L_end")
I(f"s_lshl_b32 s{S_T0}, s{S_MT}, 2")
I(f"v_mov_b32 v{V_T+4}, 1")
I(f"v_mov_b32 v{V_T+5}, 0")
I(f"s_mov_b64 exec, 1")
I(f"buffer_atomic_add v{V_T+4}, v{V_T+5}, s[{R_DBG}:{R_DBG+3}], s{S_T0} offen sc0")
I("s_waitcnt vmcnt(0)")
I(f"s_mov_b64 exec, -1")
I(f"v_readfirstlane_b32 s{S_T1}, v{V_T+4}")
I("s_nop 3")
I(f"s_cmp_lg_u32 s{S_T1}, 3")
I("s_cbranch_scc1 L_end")
I(f"s_lshl_b32 s{S_T0}, s{S_MT}, 10")
I(f"v_lshlrev_b32 v{V_T+5}, 2, v{V_L}")
for sl in range(4):
    I(f"buffer_load_dword v{V_T+6+sl}, v{V_T+5}, s[{R_WS}:{R_WS+3}], s{S_T0} offen offset:{sl*256} sc1")
I(f"s_lshl_b32 s{S_T1}, s{S_MT}, 8")
I(f"s_add_u32 s{S_T1}, s{S_T1}, {4096*4*4}")
I(f"buffer_load_dword v{V_T+10}, v{V_T+5}, s[{R_WS}:{R_WS+3}], s{S_T1} offen sc1")
I(f"v_mov_b32 v19, 0")
I(f"buffer_load_ushort v{V_B2}, v19, s[{R_B2}:{R_B2+3}], 0 offen")
I("s_waitcnt vmcnt(0)")
I(f"v_lshlrev_b32 v{V_B2}, 16, v{V_B2}")
I(f"v_add_f32 v{V_T+6}, v{V_T+6}, v{V_T+7}")
I(f"v_add_f32 v{V_T+8}, v{V_T+8}, v{V_T+9}")
I(f"v_add_f32 v{V_T+6}, v{V_T+6}, v{V_T+8}")
I(f"v_add_f32 v{V_T+6}, v{V_T+6}, v{V_B2}")
I(f"v_add_f32 v{V_T+6}, v{V_T+6}, v{V_T+10}")
I(f"v_cvt_pk_bf16_f32 v{V_T+6}, v{V_T+6}, v{V_T+6}")
I(f"s_lshl_b32 s{S_T0}, s{S_MT}, 7")
I(f"v_lshlrev_b32 v{V_T+5}, 1, v{V_L}")
I(f"buffer_store_short v{V_T+6}, v{V_T+5}, s[{R_OUT}:{R_OUT+3}], s{S_T0} offen")
L("L_end")

txt = "\n".join(hdr) + "\n; @launch grid=(256,1,1) block=(512,1,1) lds=162816\n"
txt += f""".amdgcn_target "amdgcn-amd-amdhsa--gfx950"
.text
.globl {NAME}
.p2align 8
.type {NAME},@function
{NAME}:
""" + "\n".join(out) + f"""
s_endpgm
.section .rodata,"a"
.p2align 6
.amdhsa_kernel {NAME}
  .amdhsa_next_free_vgpr 256
  .amdhsa_next_free_sgpr 102
  .amdhsa_accum_offset 160
  .amdhsa_group_segment_fixed_size 0
  .amdhsa_kernarg_size 80
  .amdhsa_user_sgpr_count 2
  .amdhsa_user_sgpr_kernarg_segment_ptr 1
  .amdhsa_system_sgpr_workgroup_id_x 1
.end_amdhsa_kernel
"""
open(sys.argv[1] if len(sys.argv) > 1 else 'standalone__deep_cross_pnn__recsys.s', 'w').write(txt)
```

```python
import sys
out = []
def I(s): out.append("    " + s)
def L(s): out.append(s + ":")

HDR = open('standalone__deep_cross_pnn__recsys.s.ref').read().split('\n')
hdr = [l for l in HDR if l.startswith(';') and not l.startswith('; @launch')]
NAME = "standalone__deep_cross_pnn__recsys_kernel"

S_MT, S_NS, S_W = 3, 4, 5
P_IDX, P_TAB, P_WP, P_W1, P_B1, P_W2, P_B2, P_OUT, P_DBG, P_WS = 16,18,20,22,24,26,28,30,32,34
R_IDX, R_TAB, R_WP, R_W1, R_B1, R_W2, R_WS, R_DBG, R_OUT, R_B2 = 36,40,44,48,52,56,60,64,68,72
S_SELLO, S_SELHI = 76, 77
S_T0, S_T1, S_T2, S_T3 = 78, 79, 80, 81
S_C1, S_C2 = 82, 83
S_EX = 84
S_BOFF = 86
V_L, V_I, V_G, V_G16 = 1, 2, 3, 4
V_BADDR = 5
V_T = 6
V_D = 16
V_WQ = 32
V_BF = 32
V_BR = 64
V_IX = 32
V_M = 152
V_PA = 152
V_B1 = 156
V_W2 = 158
V_B2 = 18
A_ACC = 0
A_AF = 64
A_AD = 128
A_PI = 228
A_E = 0
A_W1R = 0

def srd(r, p, size):
    I(f"s_mov_b32 s{r}, s{p}")
    I(f"s_and_b32 s{r+1}, s{p+1}, 0xffff")
    I(f"s_mov_b32 s{r+2}, {size}")
    I(f"s_mov_b32 s{r+3}, 0x00020000")

pairs = [(t1,t2) for t1 in range(7) for t2 in range(t1,7)]
def wq(p, r): return V_WQ + p*4 + r

I("s_cmp_ge_u32 s2, 256")
I("s_cbranch_scc1 L_end")
I("s_load_dwordx16 s[16:31], s[0:1], 0")
I("s_load_dwordx4 s[32:35], s[0:1], 64")
I(f"s_lshr_b32 s{S_MT}, s2, 2")
I(f"s_and_b32 s{S_NS}, s2, 3")
I(f"v_lshrrev_b32 v{V_T}, 6, v0")
I(f"v_and_b32 v{V_L}, 63, v0")
I(f"v_readfirstlane_b32 s{S_W}, v{V_T}")
I(f"v_and_b32 v{V_I}, 15, v0")
I(f"v_bfe_u32 v{V_G}, v0, 4, 2")
I(f"v_lshlrev_b32 v{V_G16}, 4, v{V_G}")
I(f"s_mov_b32 s{S_SELLO}, 0x05040100")
I(f"s_mov_b32 s{S_SELHI}, 0x07060302")
I(f"s_mov_b32 s{S_C1}, 0xc0135761")
I(f"s_mov_b32 s{S_C2}, 0xbdd2d3e8")
I("s_waitcnt lgkmcnt(0)")
srd(R_IDX, P_IDX, 4096*400)
srd(R_TAB, P_TAB, 128000)
srd(R_WP, P_WP, 20000)
srd(R_W1, P_W1, 6400*512)
srd(R_B1, P_B1, 512)
srd(R_W2, P_W2, 512)
srd(R_B2, P_B2, 2)
srd(R_WS, P_WS, 4096*5*4)
srd(R_DBG, P_DBG, 256)
srd(R_OUT, P_OUT, 8192)

LDS_MT = 128000
LDS_PT = 128000 + 26624
S_FS, S_FC = 89, 90
I(f"s_lshr_b32 s{S_T0}, s{S_MT}, 1")
I(f"s_mul_i32 s{S_T0}, s{S_T0}, {200*512}")
I(f"s_lshl_b32 s{S_T1}, s{S_NS}, 7")
I(f"s_add_u32 s{S_T0}, s{S_T0}, s{S_T1}")
I(f"v_lshrrev_b32 v{V_T}, 3, v0")
I(f"v_and_b32 v{V_T+1}, 7, v0")
I(f"v_lshlrev_b32 v{V_T+1}, 4, v{V_T+1}")
I(f"v_lshl_or_b32 v{V_T}, v{V_T}, 9, v{V_T+1}")
for e in range(4):
    I(f"buffer_load_dwordx4 v[{100+4*e}:{103+4*e}], v{V_T}, s[{R_W1}:{R_W1+3}], s{S_T0} offen")
    I(f"s_add_u32 s{S_T0}, s{S_T0}, {64*512}")
I(f"s_mul_i32 s{S_FS}, s{S_W}, 13")
I(f"s_mul_i32 s{S_T1}, s{S_W}, 12")
I(f"s_add_u32 s{S_T1}, s{S_T1}, 4")
I(f"s_cmp_lt_u32 s{S_W}, 4")
I(f"s_cselect_b32 s{S_FS}, s{S_FS}, s{S_T1}")
I(f"s_cselect_b32 s{S_FC}, 13, 12")
I(f"s_mul_i32 s{S_T0}, s{S_MT}, 25600")
I(f"s_lshl_b32 s{S_T1}, s{S_FS}, 2")
I(f"s_add_u32 s{S_T0}, s{S_T0}, s{S_T1}")
I(f"v_mul_u32_u24 v{V_T}, 400, v{V_L}")
for e in range(3):
    r = V_IX + e*4
    I(f"buffer_load_dwordx4 v[{r}:{r+3}], v{V_T}, s[{R_IDX}:{R_IDX+3}], s{S_T0} offen offset:{e*16}")
I(f"buffer_load_dword v{V_IX+12}, v{V_T}, s[{R_IDX}:{R_IDX+3}], s{S_T0} offen offset:48")
I(f"s_lshl_b32 s{S_T0}, s{S_MT}, 6")
I(f"s_lshl_b32 s{S_T1}, s{S_NS}, 4")
I(f"s_add_u32 s{S_T0}, s{S_T0}, s{S_T1}")
I(f"s_lshl_b32 s{S_T1}, s{S_W}, 1")
I(f"s_add_u32 s{S_T0}, s{S_T0}, s{S_T1}")
I(f"s_mul_i32 s{S_T0}, s{S_T0}, 400")
I(f"v_lshlrev_b32 v{V_T+1}, 2, v{V_L}")
I(f"v_add_u32 v{V_T+2}, 64, v{V_L}")
I(f"v_min_u32 v{V_T+2}, 99, v{V_T+2}")
I(f"v_lshlrev_b32 v{V_T+2}, 2, v{V_T+2}")
for q in range(2):
    I(f"buffer_load_dword v{V_IX+14+2*q}, v{V_T+1}, s[{R_IDX}:{R_IDX+3}], s{S_T0} offen offset:{q*400}")
    I(f"buffer_load_dword v{V_IX+15+2*q}, v{V_T+2}, s[{R_IDX}:{R_IDX+3}], s{S_T0} offen offset:{q*400}")
I(f"s_and_b32 s{S_T1}, s{S_W}, 1")
I(f"s_lshl_b32 s{S_T1}, s{S_T1}, 2")
I(f"v_lshrrev_b32 v{V_T+3}, 4, v{V_L}")
I(f"v_add_u32 v{V_T+3}, s{S_T1}, v{V_T+3}")
I(f"v_and_b32 v{V_T+4}, 7, v{V_L}")
I(f"v_xor_b32 v{V_T+4}, v{V_T+4}, v{V_T+3}")
I(f"v_lshlrev_b32 v{V_T+4}, 4, v{V_T+4}")
I(f"v_lshrrev_b32 v{V_T+3}, 3, v{V_L}")
I(f"v_lshl_or_b32 v{V_T+4}, v{V_T+3}, 7, v{V_T+4}")
I(f"s_lshl_b32 s{S_T2}, s{S_W}, 10")
L("L_dma")
I(f"s_mov_b32 m0, s{S_T2}")
I(f"s_add_u32 s{S_T3}, s{S_T2}, 8192")
I(f"buffer_load_dwordx4 v{V_T+4}, s[{R_TAB}:{R_TAB+3}], s{S_T2} offen lds")
I(f"s_mov_b32 s{S_T2}, s{S_T3}")
I(f"s_cmp_lt_u32 s{S_T2}, 128000")
I("s_cbranch_scc1 L_dma")
I("s_waitcnt vmcnt(15)")
def base_calc(src):
    I(f"v_bfe_u32 v{V_T+10}, v{src}, 1, 3")
    I(f"v_lshlrev_b32 v{src}, 7, v{src}")
    I(f"v_lshl_or_b32 v{src}, v{V_T+10}, 4, v{src}")
I(f"s_mul_i32 s{S_T0}, s{S_W}, 3328")
I(f"s_add_u32 s{S_T0}, s{S_T0}, {LDS_MT}")
I(f"v_lshlrev_b32 v{V_T+3}, 4, v{V_I}")
I(f"v_lshl_add_u32 v{V_T+3}, v{V_G}, 2, v{V_T+3}")
I(f"v_add_u32 v{V_T+3}, s{S_T0}, v{V_T+3}")
for f in range(13):
    base_calc(V_IX+f)
    I(f"ds_write_b32 v{V_T+3}, v{V_IX+f} offset:{f*256}")
I(f"s_lshl_b32 s{S_T0}, s{S_W}, 10")
I(f"s_add_u32 s{S_T0}, s{S_T0}, {LDS_PT}")
I(f"v_lshlrev_b32 v{V_T+3}, 5, v{V_I}")
I(f"v_lshl_add_u32 v{V_T+3}, v{V_G}, 2, v{V_T+3}")
I(f"v_add_u32 v{V_T+3}, s{S_T0}, v{V_T+3}")
for q in range(2):
    base_calc(V_IX+14+2*q); base_calc(V_IX+15+2*q)
    I(f"ds_write_b32 v{V_T+3}, v{V_IX+14+2*q} offset:{q*512}")
    I(f"ds_write_b32 v{V_T+3}, v{V_IX+15+2*q} offset:{q*512+16}")
I("s_waitcnt lgkmcnt(0)")
BIG = 0x7ffffff0
I(f"v_mul_u32_u24 v{V_T+5}, 200, v{V_I}")
I(f"v_lshl_add_u32 v{V_T+5}, v{V_G}, 3, v{V_T+5}")
I(f"v_mov_b32 v{V_T+9}, {BIG}")
I(f"v_cmp_gt_u32 vcc, 4, v{V_I}")
I(f"s_nop 1")
I(f"v_cndmask_b32 v{V_T+6}, v{V_T+9}, v{V_T+5}, vcc")
I(f"v_cmp_eq_u32 vcc, 0, v{V_G}")
I(f"s_nop 1")
I(f"v_cndmask_b32 v{V_T+7}, v{V_T+9}, v{V_T+6}, vcc")
I(f"v_mul_u32_u24 v{V_T+8}, 800, v{V_G}")
I(f"v_lshl_add_u32 v{V_T+8}, v{V_I}, 1, v{V_T+8}")
I(f"v_cmp_gt_u32 vcc, 4, v{V_I}")
I(f"s_nop 1")
I(f"v_cndmask_b32 v{V_T+9}, v{V_T+9}, v{V_T+8}, vcc")
for p,(t1,t2) in enumerate(pairs):
    va = V_T+5 if t2 < 6 else (V_T+6 if t1 < 6 else V_T+7)
    I(f"s_mov_b32 s{S_T1}, {t2*3200}")
    I(f"buffer_load_dwordx2 a[{A_W1R+2*p}:{A_W1R+2*p+1}], v{va}, s[{R_WP}:{R_WP+3}], s{S_T1} offen offset:{t1*32}")
    if t1 < t2:
        va = V_T+8 if t2 < 6 else V_T+9
        I(f"s_mov_b32 s{S_T1}, {t1*3200}")
        for r in range(4):
            I(f"buffer_load_ushort v{wq(p,r)}, v{va}, s[{R_WP}:{R_WP+3}], s{S_T1} offen offset:{r*200+t2*32}")
I(f"s_lshl_b32 s{S_T1}, s{S_NS}, 7")
I(f"v_and_b32 v13, 3, v{V_I}")
I(f"v_lshrrev_b32 v14, 3, v{V_I}")
I(f"v_lshl_add_u32 v13, v14, 2, v13")
I(f"v_bfe_u32 v14, v{V_I}, 2, 1")
I(f"v_lshlrev_b32 v{V_T+5}, 4, v13")
I(f"v_lshl_add_u32 v{V_T+5}, v14, 3, v{V_T+5}")
I(f"buffer_load_dwordx2 v[{V_B1}:{V_B1+1}], v{V_T+5}, s[{R_B1}:{R_B1+3}], s{S_T1} offen")
I(f"buffer_load_dwordx2 v[{V_W2}:{V_W2+1}], v{V_T+5}, s[{R_W2}:{R_W2+3}], s{S_T1} offen")

I(f"v_lshlrev_b32 v{V_BADDR}, 12, v{V_G}")
I(f"v_lshl_add_u32 v{V_BADDR}, v13, 4, v{V_BADDR}")
I(f"v_lshl_add_u32 v{V_BADDR}, v14, 11, v{V_BADDR}")
I(f"s_lshl_b32 s{S_T1}, s{S_NS}, 7")
I(f"v_add_u32 v{V_BADDR}, s{S_T1}, v{V_BADDR}")
I(f"s_lshl_b32 s{S_BOFF}, s{S_FS}, 15")
def bload(f):
    rb = f % 2
    for s in range(2):
        I(f"s_add_u32 s{S_T3}, s{S_BOFF}, {f*32768 + s*16384}")
        for r in range(4):
            d = V_BR + rb*32 + (s*4+r)*4
            I(f"buffer_load_dwordx4 v[{d}:{d+3}], v{V_BADDR}, s[{R_W1}:{R_W1+3}], s{S_T3} offen offset:{r*512}")
I("s_waitcnt vmcnt(0) lgkmcnt(0)")
I("s_barrier")
for p,(t1,t2) in enumerate(pairs):
    a0, a1 = V_T+10, V_T+11
    I(f"v_accvgpr_read_b32 v{a0}, a{A_W1R+2*p}")
    I(f"v_accvgpr_read_b32 v{a1}, a{A_W1R+2*p+1}")
    if t1 < t2:
        for r in range(4):
            I(f"v_lshlrev_b32 v{wq(p,r)}, 16, v{wq(p,r)}")
        I(f"v_lshlrev_b32 v{V_T+12}, 16, v{a0}")
        I(f"v_and_b32 v{V_T+13}, 0xffff0000, v{a0}")
        I(f"v_lshlrev_b32 v{V_T+14}, 16, v{a1}")
        I(f"v_and_b32 v{V_T+15}, 0xffff0000, v{a1}")
        for r in range(4):
            I(f"v_add_f32 v{wq(p,r)}, v{wq(p,r)}, v{V_T+12+r}")
    else:
        I(f"v_lshlrev_b32 v{wq(p,0)}, 16, v{a0}")
        I(f"v_and_b32 v{wq(p,1)}, 0xffff0000, v{a0}")
        I(f"v_lshlrev_b32 v{wq(p,2)}, 16, v{a1}")
        I(f"v_and_b32 v{wq(p,3)}, 0xffff0000, v{a1}")

V_G16B = 15
I(f"v_xor_b32 v{V_G16B}, 64, v{V_G16}")
def efrag(t, s): return A_E + (t*2+s)*4
PQ = 144
S_Q = 87
I(f"s_lshl_b32 s{S_T0}, s{S_W}, 10")
I(f"s_add_u32 s{S_T0}, s{S_T0}, {LDS_PT}")
I(f"v_lshlrev_b32 v{V_T+3}, 5, v{V_I}")
I(f"v_add_u32 v{V_T+3}, s{S_T0}, v{V_T+3}")
I(f"s_lshl_b32 s{S_T0}, s{S_MT}, 6")
I(f"s_lshl_b32 s{S_T1}, s{S_NS}, 4")
I(f"s_add_u32 s{S_T0}, s{S_T0}, s{S_T1}")
I(f"s_lshl_b32 s{S_T1}, s{S_W}, 1")
I(f"s_add_u32 s{S_T0}, s{S_T0}, s{S_T1}")
I(f"s_lshl_b32 s{S_T0}, s{S_T0}, 2")
I(f"s_add_u32 s{S_T2}, s{S_T0}, {4096*4*4}")
I(f"v_mov_b32 v{V_T+4}, 0")
I(f"s_mov_b32 s{S_Q}, 0")
L("L_pnn")
I(f"ds_read_b128 v[{PQ}:{PQ+3}], v{V_T+3}")
I(f"ds_read_b128 v[{PQ+4}:{PQ+7}], v{V_T+3} offset:16")
for r in range(4): I(f"v_mov_b32 v{V_PA+r}, 0")
I(f"v_add_u32 v{V_T+3}, 512, v{V_T+3}")
I("s_waitcnt lgkmcnt(0)")
for t in range(7):
    I(f"v_xor_b32 v{V_T+5}, v{PQ+t}, v{V_G16}")
    I(f"v_xor_b32 v{V_T+6}, v{PQ+t}, v{V_G16B}")
    e0 = efrag(t,0); e1 = efrag(t,1)
    I(f"ds_read_b128 a[{e0}:{e0+3}], v{V_T+5}")
    I(f"ds_read_b128 a[{e1}:{e1+3}], v{V_T+6}")
I("s_waitcnt lgkmcnt(0)")
LAG = 3
for p in range(28 + LAG):
    if p < 28:
        t1,t2 = pairs[p]; d = V_D + (p%4)*4
        a0,b0 = efrag(t1,0), efrag(t2,0); a1,b1 = efrag(t1,1), efrag(t2,1)
        I(f"v_mfma_f32_16x16x32_bf16 v[{d}:{d+3}], a[{a0}:{a0+3}], a[{b0}:{b0+3}], 0")
        I(f"v_mfma_f32_16x16x32_bf16 v[{d}:{d+3}], a[{a1}:{a1+3}], a[{b1}:{b1+3}], v[{d}:{d+3}]")
    else:
        I("s_nop 3")
    pp = p - LAG
    if pp >= 0:
        d = V_D + (pp%4)*4
        for r in range(4):
            I(f"v_fmac_f32 v{V_PA+r}, v{d+r}, v{wq(pp,r)}")
def dpp_add(v, mod):
    I("s_nop 1")
    I(f"v_add_f32_dpp v{v}, v{v}, v{v} {mod}")
I(f"v_add_f32 v{V_PA}, v{V_PA}, v{V_PA+1}")
I(f"v_add_f32 v{V_PA+2}, v{V_PA+2}, v{V_PA+3}")
I(f"v_add_f32 v{V_PA}, v{V_PA}, v{V_PA+2}")
for sh in (1,2,4,8): dpp_add(V_PA, f"row_shr:{sh} row_mask:0xf bank_mask:0xf bound_ctrl:0")
dpp_add(V_PA, "row_bcast:15 row_mask:0xa bank_mask:0xf")
dpp_add(V_PA, "row_bcast:31 row_mask:0xc bank_mask:0xf")
I(f"s_mov_b32 exec_lo, 0")
I(f"s_mov_b32 exec_hi, 0x80000000")
I(f"buffer_store_dword v{V_PA}, v{V_T+4}, s[{R_WS}:{R_WS+3}], s{S_T2} offen sc1")
I(f"s_mov_b64 exec, -1")
I(f"s_add_u32 s{S_T2}, s{S_T2}, 4")
I(f"s_add_u32 s{S_Q}, s{S_Q}, 1")
I(f"s_cmp_lt_u32 s{S_Q}, 2")
I("s_cbranch_scc1 L_pnn")

def af(f, t, s): return A_AF + (t*2+s)*4
def bf(f, s, j): return V_BF + (s*4+j)*4
def acc(t, j): return A_ACC + (t*4+j)*4
V_MT = V_T+3
def aq(f): return PQ + (f%2)*4
def a_reads(f):
    r = []
    for t in range(4):
        ta = V_D + t*2
        r.append(f"v_xor_b32 v{ta}, v{aq(f)+t}, v{V_G16}")
        r.append(f"v_xor_b32 v{ta+1}, v{aq(f)+t}, v{V_G16B}")
        e0 = af(f,t,0); e1 = af(f,t,1)
        r.append(f"ds_read_b128 a[{e0}:{e0+3}], v{ta}")
        r.append(f"ds_read_b128 a[{e1}:{e1+3}], v{ta+1}")
    return r
V_Y = 128
def perms(f):
    r = []
    rb = f % 2
    for s in range(2):
        for c in range(8):
            for m in range(2):
                lo = V_BR + rb*32 + (s*4+2*m)*4 + (c>>1)
                hi = V_BR + rb*32 + (s*4+2*m+1)*4 + (c>>1)
                sel = S_SELLO if (c&1)==0 else S_SELHI
                dst = bf(f,s,c)+m if c < 4 else V_Y + (c-4)*2 + m
                r.append(f"v_perm_b32 v{dst}, v{hi}, v{lo}, s{sel}")
        for j in range(4):
            for m in range(2):
                r.append(f"v_mov_b32_dpp v{bf(f,s,j)+2+m}, v{bf(f,s,j)+m} row_shl:4 row_mask:0xf bank_mask:0x5")
        for j in range(4):
            for m in range(2):
                r.append(f"v_mov_b32_dpp v{bf(f,s,j)+2+m}, v{V_Y+j*2+m} quad_perm:[0,1,2,3] row_mask:0xf bank_mask:0xa")
        for j in range(4):
            for m in range(2):
                r.append(f"v_mov_b32_dpp v{bf(f,s,j)+m}, v{V_Y+j*2+m} row_shr:4 row_mask:0xf bank_mask:0xa")
    return r
S_BL = 88
def bload_list(f, rel):
    r = []
    rb = f % 2
    for s in range(2):
        r.append(f"s_add_u32 s{S_T3}, s{S_BL}, {rel*32768 + s*16384}")
        for rr in range(4):
            d = V_BR + rb*32 + (s*4+rr)*4
            r.append(f"buffer_load_dwordx4 v[{d}:{d+3}], v{V_BADDR}, s[{R_W1}:{R_W1+3}], s{S_T3} offen offset:{rr*512}")
    return r
def mfmas(f):
    mf = []
    for s in range(2):
        for t in range(4):
            for j in range(4):
                a = af(f,t,s); b = bf(f,s,j); c = acc(t,j)
                mf.append(f"v_mfma_f32_16x16x32_bf16 a[{c}:{c+3}], a[{a}:{a+3}], v[{b}:{b+3}], a[{c}:{c+3}]")
    return mf
I(f"s_mul_i32 s{S_T0}, s{S_W}, 3328")
I(f"s_add_u32 s{S_T0}, s{S_T0}, {LDS_MT}")
I(f"v_lshlrev_b32 v{V_MT}, 4, v{V_I}")
I(f"v_add_u32 v{V_MT}, s{S_T0}, v{V_MT}")
I(f"ds_read_b128 v[{aq(0)}:{aq(0)+3}], v{V_MT}")
I(f"s_mov_b32 s{S_BL}, s{S_BOFF}")
for x in bload_list(0, 0): I(x)
for x in bload_list(1, 1): I(x)
I(f"s_add_u32 s{S_BL}, s{S_BL}, 65536")
for k in range(64): I(f"v_accvgpr_write_b32 a{A_ACC+k}, 0")
I(f"s_mov_b32 s{S_Q}, 0")
def body(f):
    I("s_waitcnt lgkmcnt(0)")
    for x in a_reads(f): I(x)
    I(f"ds_read_b128 v[{aq(f+1)}:{aq(f+1)+3}], v{V_MT} offset:256")
    I(f"v_add_u32 v{V_MT}, 256, v{V_MT}")
    I(f"s_add_u32 s{S_T0}, s{S_Q}, 2")
    I(f"s_cmp_ge_u32 s{S_T0}, s{S_FC}")
    I(f"s_cselect_b32 s{S_BL}, 0x40000000, s{S_BL}")
    I("s_waitcnt vmcnt(8)")
    for x in perms(f): I(x)
    for x in bload_list(f, 0): I(x)
    I(f"s_add_u32 s{S_BL}, s{S_BL}, 32768")
    I("s_waitcnt lgkmcnt(1)")
    for m in mfmas(f): I(m)
    I(f"s_add_u32 s{S_Q}, s{S_Q}, 1")
    I(f"s_cmp_ge_u32 s{S_Q}, s{S_FC}")
L("L_mlp")
body(0)
I("s_cbranch_scc1 L_mlpd")
body(1)
I("s_cbranch_scc0 L_mlp")
L("L_mlpd")

I("s_nop 7"); I("s_nop 7")
I("s_barrier")
I(f"v_lshlrev_b32 v{V_T}, 4, v{V_L}")
I(f"s_lshl_b32 s{S_T0}, s{S_W}, 14")
I(f"v_add_u32 v{V_T+1}, s{S_T0}, v{V_T}")
for t in range(4):
    for j in range(4):
        c = acc(t,j)
        I(f"ds_write_b128 v{V_T+1}, a[{c}:{c+3}] offset:{(t*4+j)*1024}")
I("s_waitcnt lgkmcnt(0)")
I("s_barrier")
I(f"s_cmp_ge_u32 s{S_W}, 4")
I("s_cbranch_scc1 L_skip")
I(f"s_lshl_b32 s{S_T0}, s{S_W}, 12")
I(f"v_add_u32 v{V_T+1}, s{S_T0}, v{V_T}")
I(f"v_add_u32 v{V_T+3}, 0x10000, v{V_T+1}")
VZ = 32
for wp in range(4):
    for j in range(4):
        d = VZ + (wp*4+j)*4
        I(f"ds_read_b128 v[{d}:{d+3}], v{V_T+1} offset:{wp*16384+j*1024}")
I("s_waitcnt lgkmcnt(0)")
for wp in range(4):
    for j in range(4):
        I(f"ds_read_b128 v[112:115], v{V_T+3} offset:{wp*16384+j*1024}")
        I("s_waitcnt lgkmcnt(0)")
        for r in range(4): I(f"v_add_f32 v{VZ+(wp*4+j)*4+r}, v{VZ+(wp*4+j)*4+r}, v{112+r}")
VB, VW = 96, 100
I(f"v_lshlrev_b32 v{VB}, 16, v{V_B1}")
I(f"v_and_b32 v{VB+1}, 0xffff0000, v{V_B1}")
I(f"v_lshlrev_b32 v{VB+2}, 16, v{V_B1+1}")
I(f"v_and_b32 v{VB+3}, 0xffff0000, v{V_B1+1}")
I(f"v_lshlrev_b32 v{VW}, 16, v{V_W2}")
I(f"v_and_b32 v{VW+1}, 0xffff0000, v{V_W2}")
I(f"v_lshlrev_b32 v{VW+2}, 16, v{V_W2+1}")
I(f"v_and_b32 v{VW+3}, 0xffff0000, v{V_W2+1}")
I(f"v_mov_b32 v{V_T+2}, s{S_C1}")
I("s_waitcnt lgkmcnt(0)")
VP = 104
VT2 = 108
for j in range(4):
    for r in range(4):
        z = VZ + j*4 + r
        I(f"v_add_f32 v{z}, v{z}, v{VZ+(4+j)*4+r}")
        I(f"v_add_f32 v{VT2+r}, v{VZ+(8+j)*4+r}, v{VZ+(12+j)*4+r}")
        I(f"v_add_f32 v{z}, v{z}, v{VB+j}")
        I(f"v_add_f32 v{z}, v{z}, v{VT2+r}")
    for r in range(4):
        z = VZ + j*4 + r
        I(f"v_mul_f32 v{VT2+r}, v{z}, v{z}")
        I(f"v_fma_f32 v{VT2+r}, v{VT2+r}, s{S_C2}, v{V_T+2}")
        I(f"v_mul_f32 v{VT2+r}, v{VT2+r}, v{z}")
    for r in range(4): I(f"v_exp_f32 v{VT2+r}, v{VT2+r}")
    for r in range(4): I(f"v_add_f32 v{VT2+r}, 1.0, v{VT2+r}")
    for r in range(4): I(f"v_rcp_f32 v{VT2+r}, v{VT2+r}")
    for r in range(4):
        z = VZ + j*4 + r
        I(f"v_mul_f32 v{z}, v{z}, v{VT2+r}")
    for r in range(4):
        z = VZ + j*4 + r
        if j == 0: I(f"v_mul_f32 v{VP+r}, v{z}, v{VW+j}")
        else: I(f"v_fmac_f32 v{VP+r}, v{z}, v{VW+j}")
for sh in (1,2,4,8):
    for r in range(4): dpp_add(VP+r, f"row_shr:{sh} row_mask:0xf bank_mask:0xf bound_ctrl:0")
I(f"s_lshl_b32 s{S_T0}, s2, 8")
I(f"s_lshl_b32 s{S_T1}, s{S_W}, 6")
I(f"s_add_u32 s{S_T0}, s{S_T0}, s{S_T1}")
I(f"v_lshlrev_b32 v{V_T+3}, 4, v{V_G}")
I(f"s_mov_b64 s[{S_EX}:{S_EX+1}], exec")
I(f"s_mov_b32 exec_lo, 0x80008000")
I(f"s_mov_b32 exec_hi, 0x80008000")
I(f"buffer_store_dwordx4 v[{VP}:{VP+3}], v{V_T+3}, s[{R_WS}:{R_WS+3}], s{S_T0} offen sc1")
I(f"s_mov_b64 exec, s[{S_EX}:{S_EX+1}]")
L("L_skip")
I("s_waitcnt vmcnt(0)")
I("s_barrier")
I(f"s_cmp_lg_u32 s{S_W}, 0")
I("s_cbranch_scc1 L_end")
I(f"s_lshl_b32 s{S_T0}, s{S_MT}, 2")
I(f"v_mov_b32 v{V_T+4}, 1")
I(f"v_mov_b32 v{V_T+5}, 0")
I(f"s_mov_b64 exec, 1")
I(f"buffer_atomic_add v{V_T+4}, v{V_T+5}, s[{R_DBG}:{R_DBG+3}], s{S_T0} offen sc0")
I("s_waitcnt vmcnt(0)")
I(f"s_mov_b64 exec, -1")
I(f"v_readfirstlane_b32 s{S_T1}, v{V_T+4}")
I("s_nop 3")
I(f"s_cmp_lg_u32 s{S_T1}, 3")
I("s_cbranch_scc1 L_end")
I(f"s_lshl_b32 s{S_T0}, s{S_MT}, 10")
I(f"v_lshlrev_b32 v{V_T+5}, 2, v{V_L}")
for sl in range(4):
    I(f"buffer_load_dword v{V_T+6+sl}, v{V_T+5}, s[{R_WS}:{R_WS+3}], s{S_T0} offen offset:{sl*256} sc1")
I(f"s_lshl_b32 s{S_T1}, s{S_MT}, 8")
I(f"s_add_u32 s{S_T1}, s{S_T1}, {4096*4*4}")
I(f"buffer_load_dword v{V_T+10}, v{V_T+5}, s[{R_WS}:{R_WS+3}], s{S_T1} offen sc1")
I(f"v_mov_b32 v19, 0")
I(f"buffer_load_ushort v{V_B2}, v19, s[{R_B2}:{R_B2+3}], 0 offen")
I("s_waitcnt vmcnt(0)")
I(f"v_lshlrev_b32 v{V_B2}, 16, v{V_B2}")
I(f"v_add_f32 v{V_T+6}, v{V_T+6}, v{V_T+7}")
I(f"v_add_f32 v{V_T+8}, v{V_T+8}, v{V_T+9}")
I(f"v_add_f32 v{V_T+6}, v{V_T+6}, v{V_T+8}")
I(f"v_add_f32 v{V_T+6}, v{V_T+6}, v{V_B2}")
I(f"v_add_f32 v{V_T+6}, v{V_T+6}, v{V_T+10}")
I(f"v_cvt_pk_bf16_f32 v{V_T+6}, v{V_T+6}, v{V_T+6}")
I(f"s_lshl_b32 s{S_T0}, s{S_MT}, 7")
I(f"v_lshlrev_b32 v{V_T+5}, 1, v{V_L}")
I(f"buffer_store_short v{V_T+6}, v{V_T+5}, s[{R_OUT}:{R_OUT+3}], s{S_T0} offen")
L("L_end")

txt = "\n".join(hdr) + "\n; @launch grid=(256,1,1) block=(512,1,1) lds=162816\n"
txt += f""".amdgcn_target "amdgcn-amd-amdhsa--gfx950"
.text
.globl {NAME}
.p2align 8
.type {NAME},@function
{NAME}:
""" + "\n".join(out) + f"""
s_endpgm
.section .rodata,"a"
.p2align 6
.amdhsa_kernel {NAME}
  .amdhsa_next_free_vgpr 256
  .amdhsa_next_free_sgpr 102
  .amdhsa_accum_offset 160
  .amdhsa_group_segment_fixed_size 0
  .amdhsa_kernarg_size 80
  .amdhsa_user_sgpr_count 2
  .amdhsa_user_sgpr_kernarg_segment_ptr 1
  .amdhsa_system_sgpr_workgroup_id_x 1
.end_amdhsa_kernel
"""
open(sys.argv[1] if len(sys.argv) > 1 else 'standalone__deep_cross_pnn__recsys.s', 'w').write(txt)
```

```python
import sys
out = []
def I(s): out.append("    " + s)
def L(s): out.append(s + ":")

HDR = open('standalone__deep_cross_pnn__recsys.s.ref').read().split('\n')
hdr = [l for l in HDR if l.startswith(';') and not l.startswith('; @launch')]
NAME = "standalone__deep_cross_pnn__recsys_kernel"

S_MT, S_NS, S_W = 3, 4, 5
P_IDX, P_TAB, P_WP, P_W1, P_B1, P_W2, P_B2, P_OUT, P_DBG, P_WS = 16,18,20,22,24,26,28,30,32,34
R_IDX, R_TAB, R_WP, R_W1, R_B1, R_W2, R_WS, R_DBG, R_OUT, R_B2 = 36,40,44,48,52,56,60,64,68,72
S_SELLO, S_SELHI = 76, 77
S_T0, S_T1, S_T2, S_T3 = 78, 79, 80, 81
S_C1, S_C2 = 82, 83
S_EX = 84
S_BOFF = 86
V_L, V_I, V_G, V_G16 = 1, 2, 3, 4
V_BADDR = 5
V_T = 6
V_D = 16
V_WQ = 32
V_BF = 32
V_BR = 64
V_IX = 16
V_M = 152
V_PA = 152
V_B1 = 156
V_W2 = 158
V_B2 = 18
A_ACC = 0
A_AF = 64
A_AD = 128
A_PI = 228
A_E = 0
A_W1R = 0

def srd(r, p, size):
    I(f"s_mov_b32 s{r}, s{p}")
    I(f"s_and_b32 s{r+1}, s{p+1}, 0xffff")
    I(f"s_mov_b32 s{r+2}, {size}")
    I(f"s_mov_b32 s{r+3}, 0x00020000")

pairs = [(t1,t2) for t1 in range(7) for t2 in range(t1,7)]
def wq(p, r): return V_WQ + p*4 + r

I("s_cmp_ge_u32 s2, 256")
I("s_cbranch_scc1 L_end")
I("s_load_dwordx16 s[16:31], s[0:1], 0")
I("s_load_dwordx4 s[32:35], s[0:1], 64")
I(f"s_lshr_b32 s{S_MT}, s2, 2")
I(f"s_and_b32 s{S_NS}, s2, 3")
I(f"v_lshrrev_b32 v{V_T}, 6, v0")
I(f"v_and_b32 v{V_L}, 63, v0")
I(f"v_readfirstlane_b32 s{S_W}, v{V_T}")
I(f"v_and_b32 v{V_I}, 15, v0")
I(f"v_bfe_u32 v{V_G}, v0, 4, 2")
I(f"v_lshlrev_b32 v{V_G16}, 4, v{V_G}")
I(f"s_mov_b32 s{S_SELLO}, 0x05040100")
I(f"s_mov_b32 s{S_SELHI}, 0x07060302")
I(f"s_mov_b32 s{S_C1}, 0xc0135761")
I(f"s_mov_b32 s{S_C2}, 0xbdd2d3e8")
I("s_waitcnt lgkmcnt(0)")
srd(R_IDX, P_IDX, 4096*400)
srd(R_TAB, P_TAB, 128000)
srd(R_WP, P_WP, 20000)
srd(R_W1, P_W1, 6400*512)
srd(R_B1, P_B1, 512)
srd(R_W2, P_W2, 512)
srd(R_B2, P_B2, 2)
srd(R_WS, P_WS, 4096*5*4)
srd(R_DBG, P_DBG, 256)
srd(R_OUT, P_OUT, 8192)

LDS_MT = 128000
LDS_PT = 128000 + 26624
S_FS, S_FC = 89, 90
I(f"s_lshr_b32 s{S_T0}, s{S_MT}, 1")
I(f"s_mul_i32 s{S_T0}, s{S_T0}, {200*512}")
I(f"s_lshl_b32 s{S_T1}, s{S_NS}, 7")
I(f"s_add_u32 s{S_T0}, s{S_T0}, s{S_T1}")
I(f"v_lshrrev_b32 v{V_T}, 3, v0")
I(f"v_and_b32 v{V_T+1}, 7, v0")
I(f"v_lshlrev_b32 v{V_T+1}, 4, v{V_T+1}")
I(f"v_lshl_or_b32 v{V_T}, v{V_T}, 9, v{V_T+1}")
for e in range(4):
    I(f"buffer_load_dwordx4 v[{100+4*e}:{103+4*e}], v{V_T}, s[{R_W1}:{R_W1+3}], s{S_T0} offen")
    I(f"s_add_u32 s{S_T0}, s{S_T0}, {64*512}")
I(f"v_lshlrev_b32 v{V_T+1}, 4, v{V_L}")
I(f"s_lshl_b32 s{S_T0}, s{S_W}, 10")
for e in range(3):
    I(f"s_add_u32 s{S_T1}, s{S_T0}, {LDS_MT}")
    I(f"s_mov_b32 m0, s{S_T1}")
    I("s_nop 0")
    I(f"buffer_load_dwordx4 v{V_T+1}, s[{R_WP}:{R_WP+3}], s{S_T0} offen lds")
    I(f"s_add_u32 s{S_T0}, s{S_T0}, 8192")
I(f"s_mul_i32 s{S_FS}, s{S_W}, 13")
I(f"s_mul_i32 s{S_T1}, s{S_W}, 12")
I(f"s_add_u32 s{S_T1}, s{S_T1}, 4")
I(f"s_cmp_lt_u32 s{S_W}, 4")
I(f"s_cselect_b32 s{S_FS}, s{S_FS}, s{S_T1}")
I(f"s_cselect_b32 s{S_FC}, 13, 12")
I(f"s_mul_i32 s{S_T0}, s{S_MT}, 25600")
I(f"s_lshl_b32 s{S_T1}, s{S_FS}, 2")
I(f"s_add_u32 s{S_T0}, s{S_T0}, s{S_T1}")
I(f"v_mul_u32_u24 v{V_T}, 400, v{V_L}")
for e in range(3):
    r = V_IX + e*4
    I(f"buffer_load_dwordx4 v[{r}:{r+3}], v{V_T}, s[{R_IDX}:{R_IDX+3}], s{S_T0} offen offset:{e*16}")
I(f"buffer_load_dword v{V_IX+12}, v{V_T}, s[{R_IDX}:{R_IDX+3}], s{S_T0} offen offset:48")
I(f"s_lshl_b32 s{S_T0}, s{S_MT}, 6")
I(f"s_lshl_b32 s{S_T1}, s{S_NS}, 4")
I(f"s_add_u32 s{S_T0}, s{S_T0}, s{S_T1}")
I(f"s_lshl_b32 s{S_T1}, s{S_W}, 1")
I(f"s_add_u32 s{S_T0}, s{S_T0}, s{S_T1}")
I(f"s_mul_i32 s{S_T0}, s{S_T0}, 400")
I(f"v_lshlrev_b32 v{V_T+1}, 2, v{V_L}")
I(f"v_add_u32 v{V_T+2}, 64, v{V_L}")
I(f"v_min_u32 v{V_T+2}, 99, v{V_T+2}")
I(f"v_lshlrev_b32 v{V_T+2}, 2, v{V_T+2}")
for q in range(2):
    I(f"buffer_load_dword v{144+2*q}, v{V_T+1}, s[{R_IDX}:{R_IDX+3}], s{S_T0} offen offset:{q*400}")
    I(f"buffer_load_dword v{145+2*q}, v{V_T+2}, s[{R_IDX}:{R_IDX+3}], s{S_T0} offen offset:{q*400}")
I(f"s_and_b32 s{S_T1}, s{S_W}, 1")
I(f"s_lshl_b32 s{S_T1}, s{S_T1}, 2")
I(f"v_lshrrev_b32 v{V_T+3}, 4, v{V_L}")
I(f"v_add_u32 v{V_T+3}, s{S_T1}, v{V_T+3}")
I(f"v_and_b32 v{V_T+4}, 7, v{V_L}")
I(f"v_xor_b32 v{V_T+4}, v{V_T+4}, v{V_T+3}")
I(f"v_lshlrev_b32 v{V_T+4}, 4, v{V_T+4}")
I(f"v_lshrrev_b32 v{V_T+3}, 3, v{V_L}")
I(f"v_lshl_or_b32 v{V_T+4}, v{V_T+3}, 7, v{V_T+4}")
I(f"s_lshl_b32 s{S_T2}, s{S_W}, 10")
L("L_dma")
I(f"s_mov_b32 m0, s{S_T2}")
I(f"s_add_u32 s{S_T3}, s{S_T2}, 8192")
I(f"buffer_load_dwordx4 v{V_T+4}, s[{R_TAB}:{R_TAB+3}], s{S_T2} offen lds")
I(f"s_mov_b32 s{S_T2}, s{S_T3}")
I(f"s_cmp_lt_u32 s{S_T2}, 128000")
I("s_cbranch_scc1 L_dma")
I("s_waitcnt vmcnt(15)")
I("s_barrier")
I(f"v_mul_u32_u24 v{V_T+5}, 200, v{V_I}")
I(f"v_lshl_add_u32 v{V_T+5}, v{V_G}, 3, v{V_T+5}")
I(f"v_add_u32 v{V_T+5}, {LDS_MT}, v{V_T+5}")
I(f"v_mul_u32_u24 v{V_T+8}, 800, v{V_G}")
I(f"v_lshl_add_u32 v{V_T+8}, v{V_I}, 1, v{V_T+8}")
I(f"v_add_u32 v{V_T+8}, {LDS_MT}, v{V_T+8}")
for p,(t1,t2) in enumerate(pairs):
    I(f"ds_read_b64 a[{A_W1R+2*p}:{A_W1R+2*p+1}], v{V_T+5} offset:{t2*3200+t1*32}")
    if t1 < t2:
        for r in range(4):
            I(f"ds_read_u16 v{wq(p,r)}, v{V_T+8} offset:{t1*3200+r*200+t2*32}")
I(f"v_cmp_gt_u32 s[92:93], 4, v{V_I}")
I(f"v_cmp_gt_u32 s[94:95], 4, v{V_L}")
I("s_waitcnt lgkmcnt(0)")
I("s_barrier")
def base_calc(src):
    I(f"v_bfe_u32 v29, v{src}, 1, 3")
    I(f"v_lshlrev_b32 v{src}, 7, v{src}")
    I(f"v_lshl_or_b32 v{src}, v29, 4, v{src}")
I(f"s_mul_i32 s{S_T0}, s{S_W}, 3328")
I(f"s_add_u32 s{S_T0}, s{S_T0}, {LDS_MT}")
I(f"v_lshlrev_b32 v{V_T+3}, 4, v{V_I}")
I(f"v_lshl_add_u32 v{V_T+3}, v{V_G}, 2, v{V_T+3}")
I(f"v_add_u32 v{V_T+3}, s{S_T0}, v{V_T+3}")
for f in range(13):
    base_calc(V_IX+f)
    I(f"ds_write_b32 v{V_T+3}, v{V_IX+f} offset:{f*256}")
I(f"s_lshl_b32 s{S_T0}, s{S_W}, 10")
I(f"s_add_u32 s{S_T0}, s{S_T0}, {LDS_PT}")
I(f"v_lshlrev_b32 v{V_T+3}, 5, v{V_I}")
I(f"v_lshl_add_u32 v{V_T+3}, v{V_G}, 2, v{V_T+3}")
I(f"v_add_u32 v{V_T+3}, s{S_T0}, v{V_T+3}")
for q in range(2):
    base_calc(144+2*q); base_calc(145+2*q)
    I(f"ds_write_b32 v{V_T+3}, v{144+2*q} offset:{q*512}")
    I(f"ds_write_b32 v{V_T+3}, v{145+2*q} offset:{q*512+16}")
I("s_waitcnt lgkmcnt(0)")
I(f"s_lshl_b32 s{S_T1}, s{S_NS}, 7")
I(f"v_and_b32 v13, 3, v{V_I}")
I(f"v_lshrrev_b32 v14, 3, v{V_I}")
I(f"v_lshl_add_u32 v13, v14, 2, v13")
I(f"v_bfe_u32 v14, v{V_I}, 2, 1")
I(f"v_lshlrev_b32 v{V_T+5}, 4, v13")
I(f"v_lshl_add_u32 v{V_T+5}, v14, 3, v{V_T+5}")
I(f"buffer_load_dwordx2 v[{V_B1}:{V_B1+1}], v{V_T+5}, s[{R_B1}:{R_B1+3}], s{S_T1} offen")
I(f"buffer_load_dwordx2 v[{V_W2}:{V_W2+1}], v{V_T+5}, s[{R_W2}:{R_W2+3}], s{S_T1} offen")

I(f"v_lshlrev_b32 v{V_BADDR}, 12, v{V_G}")
I(f"v_lshl_add_u32 v{V_BADDR}, v13, 4, v{V_BADDR}")
I(f"v_lshl_add_u32 v{V_BADDR}, v14, 11, v{V_BADDR}")
I(f"s_lshl_b32 s{S_T1}, s{S_NS}, 7")
I(f"v_add_u32 v{V_BADDR}, s{S_T1}, v{V_BADDR}")
I(f"s_lshl_b32 s{S_BOFF}, s{S_FS}, 15")
def bload(f):
    rb = f % 2
    for s in range(2):
        I(f"s_add_u32 s{S_T3}, s{S_BOFF}, {f*32768 + s*16384}")
        for r in range(4):
            d = V_BR + rb*32 + (s*4+r)*4
            I(f"buffer_load_dwordx4 v[{d}:{d+3}], v{V_BADDR}, s[{R_W1}:{R_W1+3}], s{S_T3} offen offset:{r*512}")
I("s_waitcnt vmcnt(0) lgkmcnt(0)")
I("s_barrier")
for p,(t1,t2) in enumerate(pairs):
    a0, a1 = V_T+10, V_T+11
    I(f"v_accvgpr_read_b32 v{a0}, a{A_W1R+2*p}")
    I(f"v_accvgpr_read_b32 v{a1}, a{A_W1R+2*p+1}")
    if t1 < t2:
        for r in range(4):
            I(f"v_lshlrev_b32 v{wq(p,r)}, 16, v{wq(p,r)}")
        I(f"v_lshlrev_b32 v{V_T+12}, 16, v{a0}")
        I(f"v_and_b32 v{V_T+13}, 0xffff0000, v{a0}")
        I(f"v_lshlrev_b32 v{V_T+14}, 16, v{a1}")
        I(f"v_and_b32 v{V_T+15}, 0xffff0000, v{a1}")
        for r in range(4):
            I(f"v_add_f32 v{wq(p,r)}, v{wq(p,r)}, v{V_T+12+r}")
    else:
        I(f"v_lshlrev_b32 v{wq(p,0)}, 16, v{a0}")
        I(f"v_and_b32 v{wq(p,1)}, 0xffff0000, v{a0}")
        I(f"v_lshlrev_b32 v{wq(p,2)}, 16, v{a1}")
        I(f"v_and_b32 v{wq(p,3)}, 0xffff0000, v{a1}")
    if t2 == 6:
        m = "s[92:93]" if t1 < 6 else "s[94:95]"
        for r in range(4): I(f"v_cndmask_b32 v{wq(p,r)}, 0, v{wq(p,r)}, {m}")

V_G16B = 15
I(f"v_xor_b32 v{V_G16B}, 64, v{V_G16}")
def efrag(t, s): return A_E + (t*2+s)*4
PQ = 144
S_Q = 87
I(f"s_lshl_b32 s{S_T0}, s{S_W}, 10")
I(f"s_add_u32 s{S_T0}, s{S_T0}, {LDS_PT}")
I(f"v_lshlrev_b32 v{V_T+3}, 5, v{V_I}")
I(f"v_add_u32 v{V_T+3}, s{S_T0}, v{V_T+3}")
I(f"s_lshl_b32 s{S_T0}, s{S_MT}, 6")
I(f"s_lshl_b32 s{S_T1}, s{S_NS}, 4")
I(f"s_add_u32 s{S_T0}, s{S_T0}, s{S_T1}")
I(f"s_lshl_b32 s{S_T1}, s{S_W}, 1")
I(f"s_add_u32 s{S_T0}, s{S_T0}, s{S_T1}")
I(f"s_lshl_b32 s{S_T0}, s{S_T0}, 2")
I(f"s_add_u32 s{S_T2}, s{S_T0}, {4096*4*4}")
I(f"v_mov_b32 v{V_T+4}, 0")
I(f"s_mov_b32 s{S_Q}, 0")
L("L_pnn")
I(f"ds_read_b128 v[{PQ}:{PQ+3}], v{V_T+3}")
I(f"ds_read_b128 v[{PQ+4}:{PQ+7}], v{V_T+3} offset:16")
for r in range(4): I(f"v_mov_b32 v{V_PA+r}, 0")
I(f"v_add_u32 v{V_T+3}, 512, v{V_T+3}")
I("s_waitcnt lgkmcnt(0)")
for t in range(7):
    I(f"v_xor_b32 v{V_T+5}, v{PQ+t}, v{V_G16}")
    I(f"v_xor_b32 v{V_T+6}, v{PQ+t}, v{V_G16B}")
    e0 = efrag(t,0); e1 = efrag(t,1)
    I(f"ds_read_b128 a[{e0}:{e0+3}], v{V_T+5}")
    I(f"ds_read_b128 a[{e1}:{e1+3}], v{V_T+6}")
I("s_waitcnt lgkmcnt(0)")
LAG = 3
for p in range(28 + LAG):
    if p < 28:
        t1,t2 = pairs[p]; d = V_D + (p%4)*4
        a0,b0 = efrag(t1,0), efrag(t2,0); a1,b1 = efrag(t1,1), efrag(t2,1)
        I(f"v_mfma_f32_16x16x32_bf16 v[{d}:{d+3}], a[{a0}:{a0+3}], a[{b0}:{b0+3}], 0")
        I(f"v_mfma_f32_16x16x32_bf16 v[{d}:{d+3}], a[{a1}:{a1+3}], a[{b1}:{b1+3}], v[{d}:{d+3}]")
    else:
        I("s_nop 3")
    pp = p - LAG
    if pp >= 0:
        d = V_D + (pp%4)*4
        for r in range(4):
            I(f"v_fmac_f32 v{V_PA+r}, v{d+r}, v{wq(pp,r)}")
def dpp_add(v, mod):
    I("s_nop 1")
    I(f"v_add_f32_dpp v{v}, v{v}, v{v} {mod}")
I(f"v_add_f32 v{V_PA}, v{V_PA}, v{V_PA+1}")
I(f"v_add_f32 v{V_PA+2}, v{V_PA+2}, v{V_PA+3}")
I(f"v_add_f32 v{V_PA}, v{V_PA}, v{V_PA+2}")
for sh in (1,2,4,8): dpp_add(V_PA, f"row_shr:{sh} row_mask:0xf bank_mask:0xf bound_ctrl:0")
dpp_add(V_PA, "row_bcast:15 row_mask:0xa bank_mask:0xf")
dpp_add(V_PA, "row_bcast:31 row_mask:0xc bank_mask:0xf")
I(f"s_mov_b32 exec_lo, 0")
I(f"s_mov_b32 exec_hi, 0x80000000")
I(f"buffer_store_dword v{V_PA}, v{V_T+4}, s[{R_WS}:{R_WS+3}], s{S_T2} offen sc1")
I(f"s_mov_b64 exec, -1")
I(f"s_add_u32 s{S_T2}, s{S_T2}, 4")
I(f"s_add_u32 s{S_Q}, s{S_Q}, 1")
I(f"s_cmp_lt_u32 s{S_Q}, 2")
I("s_cbranch_scc1 L_pnn")

def af(f, t, s): return A_AF + (t*2+s)*4
def bf(f, s, j): return V_BF + (s*4+j)*4
def acc(t, j): return A_ACC + (t*4+j)*4
V_MT = V_T+3
def aq(f): return PQ + (f%2)*4
def a_reads(f):
    r = []
    for t in range(4):
        ta = V_D + t*2
        r.append(f"v_xor_b32 v{ta}, v{aq(f)+t}, v{V_G16}")
        r.append(f"v_xor_b32 v{ta+1}, v{aq(f)+t}, v{V_G16B}")
        e0 = af(f,t,0); e1 = af(f,t,1)
        r.append(f"ds_read_b128 a[{e0}:{e0+3}], v{ta}")
        r.append(f"ds_read_b128 a[{e1}:{e1+3}], v{ta+1}")
    return r
V_Y = 128
def perms(f):
    r = []
    rb = f % 2
    for s in range(2):
        for c in range(8):
            for m in range(2):
                lo = V_BR + rb*32 + (s*4+2*m)*4 + (c>>1)
                hi = V_BR + rb*32 + (s*4+2*m+1)*4 + (c>>1)
                sel = S_SELLO if (c&1)==0 else S_SELHI
                dst = bf(f,s,c)+m if c < 4 else V_Y + (c-4)*2 + m
                r.append(f"v_perm_b32 v{dst}, v{hi}, v{lo}, s{sel}")
        for j in range(4):
            for m in range(2):
                r.append(f"v_mov_b32_dpp v{bf(f,s,j)+2+m}, v{bf(f,s,j)+m} row_shl:4 row_mask:0xf bank_mask:0x5")
        for j in range(4):
            for m in range(2):
                r.append(f"v_mov_b32_dpp v{bf(f,s,j)+2+m}, v{V_Y+j*2+m} quad_perm:[0,1,2,3] row_mask:0xf bank_mask:0xa")
        for j in range(4):
            for m in range(2):
                r.append(f"v_mov_b32_dpp v{bf(f,s,j)+m}, v{V_Y+j*2+m} row_shr:4 row_mask:0xf bank_mask:0xa")
    return r
S_BL = 88
def bload_list(f, rel):
    r = []
    rb = f % 2
    for s in range(2):
        r.append(f"s_add_u32 s{S_T3}, s{S_BL}, {rel*32768 + s*16384}")
        for rr in range(4):
            d = V_BR + rb*32 + (s*4+rr)*4
            r.append(f"buffer_load_dwordx4 v[{d}:{d+3}], v{V_BADDR}, s[{R_W1}:{R_W1+3}], s{S_T3} offen offset:{rr*512}")
    return r
def mfmas(f):
    mf = []
    for s in range(2):
        for t in range(4):
            for j in range(4):
                a = af(f,t,s); b = bf(f,s,j); c = acc(t,j)
                mf.append(f"v_mfma_f32_16x16x32_bf16 a[{c}:{c+3}], a[{a}:{a+3}], v[{b}:{b+3}], a[{c}:{c+3}]")
    return mf
I(f"s_mul_i32 s{S_T0}, s{S_W}, 3328")
I(f"s_add_u32 s{S_T0}, s{S_T0}, {LDS_MT}")
I(f"v_lshlrev_b32 v{V_MT}, 4, v{V_I}")
I(f"v_add_u32 v{V_MT}, s{S_T0}, v{V_MT}")
I(f"ds_read_b128 v[{aq(0)}:{aq(0)+3}], v{V_MT}")
I(f"s_mov_b32 s{S_BL}, s{S_BOFF}")
for x in bload_list(0, 0): I(x)
for x in bload_list(1, 1): I(x)
I(f"s_add_u32 s{S_BL}, s{S_BL}, 65536")
for k in range(64): I(f"v_accvgpr_write_b32 a{A_ACC+k}, 0")
I(f"s_mov_b32 s{S_Q}, 0")
def body(f):
    I("s_waitcnt lgkmcnt(0)")
    for x in a_reads(f): I(x)
    I(f"ds_read_b128 v[{aq(f+1)}:{aq(f+1)+3}], v{V_MT} offset:256")
    I(f"v_add_u32 v{V_MT}, 256, v{V_MT}")
    I(f"s_add_u32 s{S_T0}, s{S_Q}, 2")
    I(f"s_cmp_ge_u32 s{S_T0}, s{S_FC}")
    I(f"s_cselect_b32 s{S_BL}, 0x40000000, s{S_BL}")
    I("s_waitcnt vmcnt(8)")
    for x in perms(f): I(x)
    for x in bload_list(f, 0): I(x)
    I(f"s_add_u32 s{S_BL}, s{S_BL}, 32768")
    I("s_waitcnt lgkmcnt(1)")
    for m in mfmas(f): I(m)
    I(f"s_add_u32 s{S_Q}, s{S_Q}, 1")
    I(f"s_cmp_ge_u32 s{S_Q}, s{S_FC}")
L("L_mlp")
body(0)
I("s_cbranch_scc1 L_mlpd")
body(1)
I("s_cbranch_scc0 L_mlp")
L("L_mlpd")

I("s_nop 7"); I("s_nop 7")
I("s_barrier")
I(f"v_lshlrev_b32 v{V_T}, 4, v{V_L}")
I(f"s_lshl_b32 s{S_T0}, s{S_W}, 14")
I(f"v_add_u32 v{V_T+1}, s{S_T0}, v{V_T}")
for t in range(4):
    for j in range(4):
        c = acc(t,j)
        I(f"ds_write_b128 v{V_T+1}, a[{c}:{c+3}] offset:{(t*4+j)*1024}")
I("s_waitcnt lgkmcnt(0)")
I("s_barrier")
I(f"s_cmp_ge_u32 s{S_W}, 4")
I("s_cbranch_scc1 L_skip")
I(f"s_lshl_b32 s{S_T0}, s{S_W}, 12")
I(f"v_add_u32 v{V_T+1}, s{S_T0}, v{V_T}")
I(f"v_add_u32 v{V_T+3}, 0x10000, v{V_T+1}")
VZ = 32
for wp in range(4):
    for j in range(4):
        d = VZ + (wp*4+j)*4
        I(f"ds_read_b128 v[{d}:{d+3}], v{V_T+1} offset:{wp*16384+j*1024}")
for rnd in range(2):
    for wp in range(2):
        for j in range(4):
            d = 96 + (wp*4+j)*4
            I(f"ds_read_b128 v[{d}:{d+3}], v{V_T+3} offset:{(rnd*2+wp)*16384+j*1024}")
    I("s_waitcnt lgkmcnt(0)")
    for k in range(32): I(f"v_add_f32 v{VZ+rnd*32+k}, v{VZ+rnd*32+k}, v{96+k}")
VB, VW = 96, 100
I(f"v_lshlrev_b32 v{VB}, 16, v{V_B1}")
I(f"v_and_b32 v{VB+1}, 0xffff0000, v{V_B1}")
I(f"v_lshlrev_b32 v{VB+2}, 16, v{V_B1+1}")
I(f"v_and_b32 v{VB+3}, 0xffff0000, v{V_B1+1}")
I(f"v_lshlrev_b32 v{VW}, 16, v{V_W2}")
I(f"v_and_b32 v{VW+1}, 0xffff0000, v{V_W2}")
I(f"v_lshlrev_b32 v{VW+2}, 16, v{V_W2+1}")
I(f"v_and_b32 v{VW+3}, 0xffff0000, v{V_W2+1}")
I(f"v_mov_b32 v{V_T+2}, s{S_C1}")
I("s_waitcnt lgkmcnt(0)")
VP = 104
VT2 = 108
for j in range(4):
    for r in range(4):
        z = VZ + j*4 + r
        I(f"v_add_f32 v{z}, v{z}, v{VZ+(4+j)*4+r}")
        I(f"v_add_f32 v{VT2+r}, v{VZ+(8+j)*4+r}, v{VZ+(12+j)*4+r}")
        I(f"v_add_f32 v{z}, v{z}, v{VB+j}")
        I(f"v_add_f32 v{z}, v{z}, v{VT2+r}")
    for r in range(4):
        z = VZ + j*4 + r
        I(f"v_mul_f32 v{VT2+r}, v{z}, v{z}")
        I(f"v_fma_f32 v{VT2+r}, v{VT2+r}, s{S_C2}, v{V_T+2}")
        I(f"v_mul_f32 v{VT2+r}, v{VT2+r}, v{z}")
    for r in range(4): I(f"v_exp_f32 v{VT2+r}, v{VT2+r}")
    for r in range(4): I(f"v_add_f32 v{VT2+r}, 1.0, v{VT2+r}")
    for r in range(4): I(f"v_rcp_f32 v{VT2+r}, v{VT2+r}")
    for r in range(4):
        z = VZ + j*4 + r
        I(f"v_mul_f32 v{z}, v{z}, v{VT2+r}")
    for r in range(4):
        z = VZ + j*4 + r
        if j == 0: I(f"v_mul_f32 v{VP+r}, v{z}, v{VW+j}")
        else: I(f"v_fmac_f32 v{VP+r}, v{z}, v{VW+j}")
for sh in (1,2,4,8):
    for r in range(4): dpp_add(VP+r, f"row_shr:{sh} row_mask:0xf bank_mask:0xf bound_ctrl:0")
I(f"s_lshl_b32 s{S_T0}, s2, 8")
I(f"s_lshl_b32 s{S_T1}, s{S_W}, 6")
I(f"s_add_u32 s{S_T0}, s{S_T0}, s{S_T1}")
I(f"v_lshlrev_b32 v{V_T+3}, 4, v{V_G}")
I(f"s_mov_b64 s[{S_EX}:{S_EX+1}], exec")
I(f"s_mov_b32 exec_lo, 0x80008000")
I(f"s_mov_b32 exec_hi, 0x80008000")
I(f"buffer_store_dwordx4 v[{VP}:{VP+3}], v{V_T+3}, s[{R_WS}:{R_WS+3}], s{S_T0} offen sc1")
I(f"s_mov_b64 exec, s[{S_EX}:{S_EX+1}]")
L("L_skip")
I("s_waitcnt vmcnt(0)")
I("s_barrier")
I(f"s_cmp_lg_u32 s{S_W}, 0")
I("s_cbranch_scc1 L_end")
I(f"s_lshl_b32 s{S_T0}, s{S_MT}, 2")
I(f"v_mov_b32 v{V_T+4}, 1")
I(f"v_mov_b32 v{V_T+5}, 0")
I(f"s_mov_b64 exec, 1")
I(f"buffer_atomic_add v{V_T+4}, v{V_T+5}, s[{R_DBG}:{R_DBG+3}], s{S_T0} offen sc0")
I("s_waitcnt vmcnt(0)")
I(f"s_mov_b64 exec, -1")
I(f"v_readfirstlane_b32 s{S_T1}, v{V_T+4}")
I("s_nop 3")
I(f"s_cmp_lg_u32 s{S_T1}, 3")
I("s_cbranch_scc1 L_end")
I(f"s_lshl_b32 s{S_T0}, s{S_MT}, 10")
I(f"v_lshlrev_b32 v{V_T+5}, 2, v{V_L}")
for sl in range(4):
    I(f"buffer_load_dword v{V_T+6+sl}, v{V_T+5}, s[{R_WS}:{R_WS+3}], s{S_T0} offen offset:{sl*256} sc1")
I(f"s_lshl_b32 s{S_T1}, s{S_MT}, 8")
I(f"s_add_u32 s{S_T1}, s{S_T1}, {4096*4*4}")
I(f"buffer_load_dword v{V_T+10}, v{V_T+5}, s[{R_WS}:{R_WS+3}], s{S_T1} offen sc1")
I(f"v_mov_b32 v19, 0")
I(f"buffer_load_ushort v{V_B2}, v19, s[{R_B2}:{R_B2+3}], 0 offen")
I("s_waitcnt vmcnt(0)")
I(f"v_lshlrev_b32 v{V_B2}, 16, v{V_B2}")
I(f"v_add_f32 v{V_T+6}, v{V_T+6}, v{V_T+7}")
I(f"v_add_f32 v{V_T+8}, v{V_T+8}, v{V_T+9}")
I(f"v_add_f32 v{V_T+6}, v{V_T+6}, v{V_T+8}")
I(f"v_add_f32 v{V_T+6}, v{V_T+6}, v{V_B2}")
I(f"v_add_f32 v{V_T+6}, v{V_T+6}, v{V_T+10}")
I(f"v_cvt_pk_bf16_f32 v{V_T+6}, v{V_T+6}, v{V_T+6}")
I(f"s_lshl_b32 s{S_T0}, s{S_MT}, 7")
I(f"v_lshlrev_b32 v{V_T+5}, 1, v{V_L}")
I(f"buffer_store_short v{V_T+6}, v{V_T+5}, s[{R_OUT}:{R_OUT+3}], s{S_T0} offen")
L("L_end")

txt = "\n".join(hdr) + "\n; @launch grid=(256,1,1) block=(512,1,1) lds=162816\n"
txt += f""".amdgcn_target "amdgcn-amd-amdhsa--gfx950"
.text
.globl {NAME}
.p2align 8
.type {NAME},@function
{NAME}:
""" + "\n".join(out) + f"""
s_endpgm
.section .rodata,"a"
.p2align 6
.amdhsa_kernel {NAME}
  .amdhsa_next_free_vgpr 256
  .amdhsa_next_free_sgpr 102
  .amdhsa_accum_offset 160
  .amdhsa_group_segment_fixed_size 0
  .amdhsa_kernarg_size 80
  .amdhsa_user_sgpr_count 2
  .amdhsa_user_sgpr_kernarg_segment_ptr 1
  .amdhsa_system_sgpr_workgroup_id_x 1
.end_amdhsa_kernel
"""
open(sys.argv[1] if len(sys.argv) > 1 else 'standalone__deep_cross_pnn__recsys.s', 'w').write(txt)
```

```python
import sys
out = []
def I(s): out.append("    " + s)
def L(s): out.append(s + ":")

HDR = open('standalone__deep_cross_pnn__recsys.s.ref').read().split('\n')
hdr = [l for l in HDR if l.startswith(';') and not l.startswith('; @launch')]
NAME = "standalone__deep_cross_pnn__recsys_kernel"

S_MT, S_NS, S_W = 3, 4, 5
P_IDX, P_TAB, P_WP, P_W1, P_B1, P_W2, P_B2, P_OUT, P_DBG, P_WS = 16,18,20,22,24,26,28,30,32,34
R_IDX, R_TAB, R_WP, R_W1, R_B1, R_W2, R_WS, R_DBG, R_OUT, R_B2 = 36,40,44,48,52,56,60,64,68,72
S_SELLO, S_SELHI = 76, 77
S_T0, S_T1, S_T2, S_T3 = 78, 79, 80, 81
S_C1, S_C2 = 82, 83
S_EX = 84
S_BOFF = 86
V_L, V_I, V_G, V_G16 = 1, 2, 3, 4
V_BADDR = 5
V_T = 6
V_D = 16
V_WQ = 32
V_BF = 32
V_BR = 64
V_IX = 16
V_M = 152
V_PA = 152
V_B1 = 156
V_W2 = 158
V_B2 = 18
A_ACC = 0
A_AF = 64
A_AD = 128
A_PI = 228
A_E = 0
A_W1R = 0

def srd(r, p, size):
    I(f"s_mov_b32 s{r}, s{p}")
    I(f"s_and_b32 s{r+1}, s{p+1}, 0xffff")
    I(f"s_mov_b32 s{r+2}, {size}")
    I(f"s_mov_b32 s{r+3}, 0x00020000")

pairs = [(t1,t2) for t1 in range(7) for t2 in range(t1,7)]
def wq(p, r): return V_WQ + p*4 + r

I("s_cmp_ge_u32 s2, 256")
I("s_cbranch_scc1 L_end")
I("s_load_dwordx16 s[16:31], s[0:1], 0")
I("s_load_dwordx4 s[32:35], s[0:1], 64")
I(f"s_lshr_b32 s{S_MT}, s2, 2")
I(f"s_and_b32 s{S_NS}, s2, 3")
I(f"v_lshrrev_b32 v{V_T}, 6, v0")
I(f"v_and_b32 v{V_L}, 63, v0")
I(f"v_readfirstlane_b32 s{S_W}, v{V_T}")
I(f"v_and_b32 v{V_I}, 15, v0")
I(f"v_bfe_u32 v{V_G}, v0, 4, 2")
I(f"v_lshlrev_b32 v{V_G16}, 4, v{V_G}")
I(f"s_mov_b32 s{S_SELLO}, 0x05040100")
I(f"s_mov_b32 s{S_SELHI}, 0x07060302")
I(f"s_mov_b32 s{S_C1}, 0xc0135761")
I(f"s_mov_b32 s{S_C2}, 0xbdd2d3e8")
I("s_waitcnt lgkmcnt(0)")
srd(R_IDX, P_IDX, 4096*400)
srd(R_TAB, P_TAB, 128000)
srd(R_WP, P_WP, 20000)
srd(R_W1, P_W1, 6400*512)
srd(R_B1, P_B1, 512)
srd(R_W2, P_W2, 512)
srd(R_B2, P_B2, 2)
srd(R_WS, P_WS, 4096*5*4)
srd(R_DBG, P_DBG, 256)
srd(R_OUT, P_OUT, 8192)

LDS_MT = 128000
LDS_PT = 128000 + 26624
S_FS, S_FC = 89, 90
I(f"s_lshr_b32 s{S_T0}, s{S_MT}, 1")
I(f"s_mul_i32 s{S_T0}, s{S_T0}, {200*512}")
I(f"s_lshl_b32 s{S_T1}, s{S_NS}, 7")
I(f"s_add_u32 s{S_T0}, s{S_T0}, s{S_T1}")
I(f"v_lshrrev_b32 v{V_T}, 3, v0")
I(f"v_and_b32 v{V_T+1}, 7, v0")
I(f"v_lshlrev_b32 v{V_T+1}, 4, v{V_T+1}")
I(f"v_lshl_or_b32 v{V_T}, v{V_T}, 9, v{V_T+1}")
for e in range(4):
    I(f"buffer_load_dwordx4 v[{100+4*e}:{103+4*e}], v{V_T}, s[{R_W1}:{R_W1+3}], s{S_T0} offen")
    I(f"s_add_u32 s{S_T0}, s{S_T0}, {64*512}")
I(f"v_lshlrev_b32 v{V_T+1}, 4, v{V_L}")
I(f"s_lshl_b32 s{S_T0}, s{S_W}, 10")
for e in range(3):
    I(f"s_add_u32 s{S_T1}, s{S_T0}, {LDS_MT}")
    I(f"s_mov_b32 m0, s{S_T1}")
    I("s_nop 0")
    I(f"buffer_load_dwordx4 v{V_T+1}, s[{R_WP}:{R_WP+3}], s{S_T0} offen lds")
    I(f"s_add_u32 s{S_T0}, s{S_T0}, 8192")
I(f"s_mul_i32 s{S_FS}, s{S_W}, 13")
I(f"s_mul_i32 s{S_T1}, s{S_W}, 12")
I(f"s_add_u32 s{S_T1}, s{S_T1}, 4")
I(f"s_cmp_lt_u32 s{S_W}, 4")
I(f"s_cselect_b32 s{S_FS}, s{S_FS}, s{S_T1}")
I(f"s_cselect_b32 s{S_FC}, 13, 12")
I(f"s_mul_i32 s{S_T0}, s{S_MT}, 25600")
I(f"s_lshl_b32 s{S_T1}, s{S_FS}, 2")
I(f"s_add_u32 s{S_T0}, s{S_T0}, s{S_T1}")
I(f"v_mul_u32_u24 v{V_T}, 400, v{V_L}")
for e in range(3):
    r = V_IX + e*4
    I(f"buffer_load_dwordx4 v[{r}:{r+3}], v{V_T}, s[{R_IDX}:{R_IDX+3}], s{S_T0} offen offset:{e*16}")
I(f"buffer_load_dword v{V_IX+12}, v{V_T}, s[{R_IDX}:{R_IDX+3}], s{S_T0} offen offset:48")
I(f"s_lshl_b32 s{S_T0}, s{S_MT}, 6")
I(f"s_lshl_b32 s{S_T1}, s{S_NS}, 4")
I(f"s_add_u32 s{S_T0}, s{S_T0}, s{S_T1}")
I(f"s_lshl_b32 s{S_T1}, s{S_W}, 1")
I(f"s_add_u32 s{S_T0}, s{S_T0}, s{S_T1}")
I(f"s_mul_i32 s{S_T0}, s{S_T0}, 400")
I(f"v_lshlrev_b32 v{V_T+1}, 2, v{V_L}")
I(f"v_add_u32 v{V_T+2}, 64, v{V_L}")
I(f"v_min_u32 v{V_T+2}, 99, v{V_T+2}")
I(f"v_lshlrev_b32 v{V_T+2}, 2, v{V_T+2}")
for q in range(2):
    I(f"buffer_load_dword v{144+2*q}, v{V_T+1}, s[{R_IDX}:{R_IDX+3}], s{S_T0} offen offset:{q*400}")
    I(f"buffer_load_dword v{145+2*q}, v{V_T+2}, s[{R_IDX}:{R_IDX+3}], s{S_T0} offen offset:{q*400}")
I(f"s_and_b32 s{S_T1}, s{S_W}, 1")
I(f"s_lshl_b32 s{S_T1}, s{S_T1}, 2")
I(f"v_lshrrev_b32 v{V_T+3}, 4, v{V_L}")
I(f"v_add_u32 v{V_T+3}, s{S_T1}, v{V_T+3}")
I(f"v_and_b32 v{V_T+4}, 7, v{V_L}")
I(f"v_xor_b32 v{V_T+4}, v{V_T+4}, v{V_T+3}")
I(f"v_lshlrev_b32 v{V_T+4}, 4, v{V_T+4}")
I(f"v_lshrrev_b32 v{V_T+3}, 3, v{V_L}")
I(f"v_lshl_or_b32 v{V_T+4}, v{V_T+3}, 7, v{V_T+4}")
I(f"s_lshl_b32 s{S_T2}, s{S_W}, 10")
L("L_dma")
I(f"s_mov_b32 m0, s{S_T2}")
I(f"s_add_u32 s{S_T3}, s{S_T2}, 8192")
I(f"buffer_load_dwordx4 v{V_T+4}, s[{R_TAB}:{R_TAB+3}], s{S_T2} offen lds")
I(f"s_mov_b32 s{S_T2}, s{S_T3}")
I(f"s_cmp_lt_u32 s{S_T2}, 128000")
I("s_cbranch_scc1 L_dma")
I("s_waitcnt vmcnt(15)")
I("s_barrier")
I(f"v_mul_u32_u24 v{V_T+5}, 200, v{V_I}")
I(f"v_lshl_add_u32 v{V_T+5}, v{V_G}, 3, v{V_T+5}")
I(f"v_add_u32 v{V_T+5}, {LDS_MT}, v{V_T+5}")
I(f"v_mul_u32_u24 v{V_T+8}, 800, v{V_G}")
I(f"v_lshl_add_u32 v{V_T+8}, v{V_I}, 1, v{V_T+8}")
I(f"v_add_u32 v{V_T+8}, {LDS_MT}, v{V_T+8}")
for p,(t1,t2) in enumerate(pairs):
    I(f"ds_read_b64 a[{A_W1R+2*p}:{A_W1R+2*p+1}], v{V_T+5} offset:{t2*3200+t1*32}")
    if t1 < t2:
        for r in range(4):
            I(f"ds_read_u16 v{wq(p,r)}, v{V_T+8} offset:{t1*3200+r*200+t2*32}")
I(f"v_cmp_gt_u32 s[92:93], 4, v{V_I}")
I(f"v_cmp_gt_u32 s[94:95], 4, v{V_L}")
I("s_waitcnt lgkmcnt(0)")
I("s_barrier")
def base_calc(src):
    I(f"v_bfe_u32 v29, v{src}, 1, 3")
    I(f"v_lshlrev_b32 v{src}, 7, v{src}")
    I(f"v_lshl_or_b32 v{src}, v29, 4, v{src}")
I(f"s_mul_i32 s{S_T0}, s{S_W}, 3328")
I(f"s_add_u32 s{S_T0}, s{S_T0}, {LDS_MT}")
I(f"v_lshlrev_b32 v{V_T+3}, 4, v{V_I}")
I(f"v_lshl_add_u32 v{V_T+3}, v{V_G}, 2, v{V_T+3}")
I(f"v_add_u32 v{V_T+3}, s{S_T0}, v{V_T+3}")
for f in range(13):
    base_calc(V_IX+f)
    I(f"ds_write_b32 v{V_T+3}, v{V_IX+f} offset:{f*256}")
I(f"s_lshl_b32 s{S_T0}, s{S_W}, 10")
I(f"s_add_u32 s{S_T0}, s{S_T0}, {LDS_PT}")
I(f"v_lshlrev_b32 v{V_T+3}, 5, v{V_I}")
I(f"v_lshl_add_u32 v{V_T+3}, v{V_G}, 2, v{V_T+3}")
I(f"v_add_u32 v{V_T+3}, s{S_T0}, v{V_T+3}")
for q in range(2):
    base_calc(144+2*q); base_calc(145+2*q)
    I(f"ds_write_b32 v{V_T+3}, v{144+2*q} offset:{q*512}")
    I(f"ds_write_b32 v{V_T+3}, v{145+2*q} offset:{q*512+16}")
I("s_waitcnt lgkmcnt(0)")
I(f"s_lshl_b32 s{S_T1}, s{S_NS}, 7")
I(f"v_and_b32 v13, 3, v{V_I}")
I(f"v_lshrrev_b32 v14, 3, v{V_I}")
I(f"v_lshl_add_u32 v13, v14, 2, v13")
I(f"v_bfe_u32 v14, v{V_I}, 2, 1")
I(f"v_lshlrev_b32 v{V_T+5}, 4, v13")
I(f"v_lshl_add_u32 v{V_T+5}, v14, 3, v{V_T+5}")
I(f"buffer_load_dwordx2 v[{V_B1}:{V_B1+1}], v{V_T+5}, s[{R_B1}:{R_B1+3}], s{S_T1} offen")
I(f"buffer_load_dwordx2 v[{V_W2}:{V_W2+1}], v{V_T+5}, s[{R_W2}:{R_W2+3}], s{S_T1} offen")

I(f"v_lshlrev_b32 v{V_BADDR}, 12, v{V_G}")
I(f"v_lshl_add_u32 v{V_BADDR}, v13, 4, v{V_BADDR}")
I(f"v_lshl_add_u32 v{V_BADDR}, v14, 11, v{V_BADDR}")
I(f"s_lshl_b32 s{S_T1}, s{S_NS}, 7")
I(f"v_add_u32 v{V_BADDR}, s{S_T1}, v{V_BADDR}")
I(f"s_lshl_b32 s{S_BOFF}, s{S_FS}, 15")
def bload(f):
    rb = f % 2
    for s in range(2):
        I(f"s_add_u32 s{S_T3}, s{S_BOFF}, {f*32768 + s*16384}")
        for r in range(4):
            d = V_BR + rb*32 + (s*4+r)*4
            I(f"buffer_load_dwordx4 v[{d}:{d+3}], v{V_BADDR}, s[{R_W1}:{R_W1+3}], s{S_T3} offen offset:{r*512}")
I("s_waitcnt vmcnt(0) lgkmcnt(0)")
I("s_barrier")
for p,(t1,t2) in enumerate(pairs):
    a0, a1 = V_T+10, V_T+11
    I(f"v_accvgpr_read_b32 v{a0}, a{A_W1R+2*p}")
    I(f"v_accvgpr_read_b32 v{a1}, a{A_W1R+2*p+1}")
    if t1 < t2:
        for r in range(4):
            I(f"v_lshlrev_b32 v{wq(p,r)}, 16, v{wq(p,r)}")
        I(f"v_lshlrev_b32 v{V_T+12}, 16, v{a0}")
        I(f"v_and_b32 v{V_T+13}, 0xffff0000, v{a0}")
        I(f"v_lshlrev_b32 v{V_T+14}, 16, v{a1}")
        I(f"v_and_b32 v{V_T+15}, 0xffff0000, v{a1}")
        for r in range(4):
            I(f"v_add_f32 v{wq(p,r)}, v{wq(p,r)}, v{V_T+12+r}")
    else:
        I(f"v_lshlrev_b32 v{wq(p,0)}, 16, v{a0}")
        I(f"v_and_b32 v{wq(p,1)}, 0xffff0000, v{a0}")
        I(f"v_lshlrev_b32 v{wq(p,2)}, 16, v{a1}")
        I(f"v_and_b32 v{wq(p,3)}, 0xffff0000, v{a1}")
    if t2 == 6:
        m = "s[92:93]" if t1 < 6 else "s[94:95]"
        for r in range(4): I(f"v_cndmask_b32 v{wq(p,r)}, 0, v{wq(p,r)}, {m}")

V_G16B = 15
I(f"v_xor_b32 v{V_G16B}, 64, v{V_G16}")
def efrag(t, s): return A_E + (t*2+s)*4
PQ = 144
S_Q = 87
I(f"s_lshl_b32 s{S_T0}, s{S_W}, 10")
I(f"s_add_u32 s{S_T0}, s{S_T0}, {LDS_PT}")
I(f"v_lshlrev_b32 v{V_T+3}, 5, v{V_I}")
I(f"v_add_u32 v{V_T+3}, s{S_T0}, v{V_T+3}")
I(f"s_lshl_b32 s{S_T0}, s{S_MT}, 6")
I(f"s_lshl_b32 s{S_T1}, s{S_NS}, 4")
I(f"s_add_u32 s{S_T0}, s{S_T0}, s{S_T1}")
I(f"s_lshl_b32 s{S_T1}, s{S_W}, 1")
I(f"s_add_u32 s{S_T0}, s{S_T0}, s{S_T1}")
I(f"s_lshl_b32 s{S_T0}, s{S_T0}, 2")
I(f"s_add_u32 s{S_T2}, s{S_T0}, {4096*4*4}")
I(f"v_mov_b32 v{V_T+4}, 0")
I(f"s_mov_b32 s{S_Q}, 0")
L("L_pnn")
I(f"ds_read_b128 v[{PQ}:{PQ+3}], v{V_T+3}")
I(f"ds_read_b128 v[{PQ+4}:{PQ+7}], v{V_T+3} offset:16")
for r in range(4): I(f"v_mov_b32 v{V_PA+r}, 0")
I(f"v_add_u32 v{V_T+3}, 512, v{V_T+3}")
I("s_waitcnt lgkmcnt(0)")
for t in range(7):
    I(f"v_xor_b32 v{V_T+5}, v{PQ+t}, v{V_G16}")
    I(f"v_xor_b32 v{V_T+6}, v{PQ+t}, v{V_G16B}")
    e0 = efrag(t,0); e1 = efrag(t,1)
    I(f"ds_read_b128 a[{e0}:{e0+3}], v{V_T+5}")
    I(f"ds_read_b128 a[{e1}:{e1+3}], v{V_T+6}")
I("s_waitcnt lgkmcnt(0)")
LAG = 3
for p in range(28 + LAG):
    if p < 28:
        t1,t2 = pairs[p]; d = V_D + (p%4)*4
        a0,b0 = efrag(t1,0), efrag(t2,0); a1,b1 = efrag(t1,1), efrag(t2,1)
        I(f"v_mfma_f32_16x16x32_bf16 v[{d}:{d+3}], a[{a0}:{a0+3}], a[{b0}:{b0+3}], 0")
        I(f"v_mfma_f32_16x16x32_bf16 v[{d}:{d+3}], a[{a1}:{a1+3}], a[{b1}:{b1+3}], v[{d}:{d+3}]")
    else:
        I("s_nop 3")
    pp = p - LAG
    if pp >= 0:
        d = V_D + (pp%4)*4
        for r in range(4):
            I(f"v_fmac_f32 v{V_PA+r}, v{d+r}, v{wq(pp,r)}")
def dpp_add(v, mod):
    I("s_nop 1")
    I(f"v_add_f32_dpp v{v}, v{v}, v{v} {mod}")
I(f"v_add_f32 v{V_PA}, v{V_PA}, v{V_PA+1}")
I(f"v_add_f32 v{V_PA+2}, v{V_PA+2}, v{V_PA+3}")
I(f"v_add_f32 v{V_PA}, v{V_PA}, v{V_PA+2}")
for sh in (1,2,4,8): dpp_add(V_PA, f"row_shr:{sh} row_mask:0xf bank_mask:0xf bound_ctrl:0")
dpp_add(V_PA, "row_bcast:15 row_mask:0xa bank_mask:0xf")
dpp_add(V_PA, "row_bcast:31 row_mask:0xc bank_mask:0xf")
I(f"s_mov_b32 exec_lo, 0")
I(f"s_mov_b32 exec_hi, 0x80000000")
I(f"buffer_store_dword v{V_PA}, v{V_T+4}, s[{R_WS}:{R_WS+3}], s{S_T2} offen")
I(f"s_mov_b64 exec, -1")
I(f"s_add_u32 s{S_T2}, s{S_T2}, 4")
I(f"s_add_u32 s{S_Q}, s{S_Q}, 1")
I(f"s_cmp_lt_u32 s{S_Q}, 2")
I("s_cbranch_scc1 L_pnn")

def af(f, t, s): return A_AF + (t*2+s)*4
def bf(f, s, j): return V_BF + (s*4+j)*4
def acc(t, j): return A_ACC + (t*4+j)*4
V_MT = V_T+3
def aq(f): return PQ + (f%2)*4
def a_reads(f):
    r = []
    for t in range(4):
        ta = V_D + t*2
        r.append(f"v_xor_b32 v{ta}, v{aq(f)+t}, v{V_G16}")
        r.append(f"v_xor_b32 v{ta+1}, v{aq(f)+t}, v{V_G16B}")
        e0 = af(f,t,0); e1 = af(f,t,1)
        r.append(f"ds_read_b128 a[{e0}:{e0+3}], v{ta}")
        r.append(f"ds_read_b128 a[{e1}:{e1+3}], v{ta+1}")
    return r
V_Y = 128
def perms(f):
    r = []
    rb = f % 2
    for s in range(2):
        for c in range(8):
            for m in range(2):
                lo = V_BR + rb*32 + (s*4+2*m)*4 + (c>>1)
                hi = V_BR + rb*32 + (s*4+2*m+1)*4 + (c>>1)
                sel = S_SELLO if (c&1)==0 else S_SELHI
                dst = bf(f,s,c)+m if c < 4 else V_Y + (c-4)*2 + m
                r.append(f"v_perm_b32 v{dst}, v{hi}, v{lo}, s{sel}")
        for j in range(4):
            for m in range(2):
                r.append(f"v_mov_b32_dpp v{bf(f,s,j)+2+m}, v{bf(f,s,j)+m} row_shl:4 row_mask:0xf bank_mask:0x5")
        for j in range(4):
            for m in range(2):
                r.append(f"v_mov_b32_dpp v{bf(f,s,j)+2+m}, v{V_Y+j*2+m} quad_perm:[0,1,2,3] row_mask:0xf bank_mask:0xa")
        for j in range(4):
            for m in range(2):
                r.append(f"v_mov_b32_dpp v{bf(f,s,j)+m}, v{V_Y+j*2+m} row_shr:4 row_mask:0xf bank_mask:0xa")
    return r
S_BL = 88
def bload_list(f, rel):
    r = []
    rb = f % 2
    for s in range(2):
        r.append(f"s_add_u32 s{S_T3}, s{S_BL}, {rel*32768 + s*16384}")
        for rr in range(4):
            d = V_BR + rb*32 + (s*4+rr)*4
            r.append(f"buffer_load_dwordx4 v[{d}:{d+3}], v{V_BADDR}, s[{R_W1}:{R_W1+3}], s{S_T3} offen offset:{rr*512}")
    return r
def mfmas(f):
    mf = []
    for s in range(2):
        for t in range(4):
            for j in range(4):
                a = af(f,t,s); b = bf(f,s,j); c = acc(t,j)
                mf.append(f"v_mfma_f32_16x16x32_bf16 a[{c}:{c+3}], a[{a}:{a+3}], v[{b}:{b+3}], a[{c}:{c+3}]")
    return mf
I(f"s_mul_i32 s{S_T0}, s{S_W}, 3328")
I(f"s_add_u32 s{S_T0}, s{S_T0}, {LDS_MT}")
I(f"v_lshlrev_b32 v{V_MT}, 4, v{V_I}")
I(f"v_add_u32 v{V_MT}, s{S_T0}, v{V_MT}")
I(f"ds_read_b128 v[{aq(0)}:{aq(0)+3}], v{V_MT}")
I(f"s_mov_b32 s{S_BL}, s{S_BOFF}")
for x in bload_list(0, 0): I(x)
for x in bload_list(1, 1): I(x)
I(f"s_add_u32 s{S_BL}, s{S_BL}, 65536")
for k in range(64): I(f"v_accvgpr_write_b32 a{A_ACC+k}, 0")
I(f"s_mov_b32 s{S_Q}, 0")
def body(f):
    I("s_waitcnt lgkmcnt(0)")
    for x in a_reads(f): I(x)
    I(f"ds_read_b128 v[{aq(f+1)}:{aq(f+1)+3}], v{V_MT} offset:256")
    I(f"v_add_u32 v{V_MT}, 256, v{V_MT}")
    I(f"s_add_u32 s{S_T0}, s{S_Q}, 2")
    I(f"s_cmp_ge_u32 s{S_T0}, s{S_FC}")
    I(f"s_cselect_b32 s{S_BL}, 0x40000000, s{S_BL}")
    I("s_waitcnt vmcnt(8)")
    for x in perms(f): I(x)
    for x in bload_list(f, 0): I(x)
    I(f"s_add_u32 s{S_BL}, s{S_BL}, 32768")
    I("s_waitcnt lgkmcnt(1)")
    for m in mfmas(f): I(m)
    I(f"s_add_u32 s{S_Q}, s{S_Q}, 1")
    I(f"s_cmp_ge_u32 s{S_Q}, s{S_FC}")
L("L_mlp")
body(0)
I("s_cbranch_scc1 L_mlpd")
body(1)
I("s_cbranch_scc0 L_mlp")
L("L_mlpd")

I("s_nop 7"); I("s_nop 7")
I("s_barrier")
I(f"v_lshlrev_b32 v{V_T}, 4, v{V_L}")
I(f"s_lshl_b32 s{S_T0}, s{S_W}, 14")
I(f"v_add_u32 v{V_T+1}, s{S_T0}, v{V_T}")
for t in range(4):
    for j in range(4):
        c = acc(t,j)
        I(f"ds_write_b128 v{V_T+1}, a[{c}:{c+3}] offset:{(t*4+j)*1024}")
I("s_waitcnt lgkmcnt(0)")
I("s_barrier")
I(f"s_cmp_ge_u32 s{S_W}, 4")
I("s_cbranch_scc1 L_skip")
I(f"s_lshl_b32 s{S_T0}, s{S_W}, 12")
I(f"v_add_u32 v{V_T+1}, s{S_T0}, v{V_T}")
I(f"v_add_u32 v{V_T+3}, 0x10000, v{V_T+1}")
VZ = 32
for wp in range(4):
    for j in range(4):
        d = VZ + (wp*4+j)*4
        I(f"ds_read_b128 v[{d}:{d+3}], v{V_T+1} offset:{wp*16384+j*1024}")
for rnd in range(2):
    for wp in range(2):
        for j in range(4):
            d = 96 + (wp*4+j)*4
            I(f"ds_read_b128 v[{d}:{d+3}], v{V_T+3} offset:{(rnd*2+wp)*16384+j*1024}")
    I("s_waitcnt lgkmcnt(0)")
    for k in range(32): I(f"v_add_f32 v{VZ+rnd*32+k}, v{VZ+rnd*32+k}, v{96+k}")
VB, VW = 96, 100
I(f"v_lshlrev_b32 v{VB}, 16, v{V_B1}")
I(f"v_and_b32 v{VB+1}, 0xffff0000, v{V_B1}")
I(f"v_lshlrev_b32 v{VB+2}, 16, v{V_B1+1}")
I(f"v_and_b32 v{VB+3}, 0xffff0000, v{V_B1+1}")
I(f"v_lshlrev_b32 v{VW}, 16, v{V_W2}")
I(f"v_and_b32 v{VW+1}, 0xffff0000, v{V_W2}")
I(f"v_lshlrev_b32 v{VW+2}, 16, v{V_W2+1}")
I(f"v_and_b32 v{VW+3}, 0xffff0000, v{V_W2+1}")
I(f"v_mov_b32 v{V_T+2}, s{S_C1}")
I("s_waitcnt lgkmcnt(0)")
VP = 104
VT2 = 108
for j in range(4):
    for r in range(4):
        z = VZ + j*4 + r
        I(f"v_add_f32 v{z}, v{z}, v{VZ+(4+j)*4+r}")
        I(f"v_add_f32 v{VT2+r}, v{VZ+(8+j)*4+r}, v{VZ+(12+j)*4+r}")
        I(f"v_add_f32 v{z}, v{z}, v{VB+j}")
        I(f"v_add_f32 v{z}, v{z}, v{VT2+r}")
    for r in range(4):
        z = VZ + j*4 + r
        I(f"v_mul_f32 v{VT2+r}, v{z}, v{z}")
        I(f"v_fma_f32 v{VT2+r}, v{VT2+r}, s{S_C2}, v{V_T+2}")
        I(f"v_mul_f32 v{VT2+r}, v{VT2+r}, v{z}")
    for r in range(4): I(f"v_exp_f32 v{VT2+r}, v{VT2+r}")
    for r in range(4): I(f"v_add_f32 v{VT2+r}, 1.0, v{VT2+r}")
    for r in range(4): I(f"v_rcp_f32 v{VT2+r}, v{VT2+r}")
    for r in range(4):
        z = VZ + j*4 + r
        I(f"v_mul_f32 v{z}, v{z}, v{VT2+r}")
    for r in range(4):
        z = VZ + j*4 + r
        if j == 0: I(f"v_mul_f32 v{VP+r}, v{z}, v{VW+j}")
        else: I(f"v_fmac_f32 v{VP+r}, v{z}, v{VW+j}")
for sh in (1,2,4,8):
    for r in range(4): dpp_add(VP+r, f"row_shr:{sh} row_mask:0xf bank_mask:0xf bound_ctrl:0")
I(f"s_lshl_b32 s{S_T0}, s2, 8")
I(f"s_lshl_b32 s{S_T1}, s{S_W}, 6")
I(f"s_add_u32 s{S_T0}, s{S_T0}, s{S_T1}")
I(f"v_lshlrev_b32 v{V_T+3}, 4, v{V_G}")
I(f"s_mov_b64 s[{S_EX}:{S_EX+1}], exec")
I(f"s_mov_b32 exec_lo, 0x80008000")
I(f"s_mov_b32 exec_hi, 0x80008000")
I(f"buffer_store_dwordx4 v[{VP}:{VP+3}], v{V_T+3}, s[{R_WS}:{R_WS+3}], s{S_T0} offen")
I(f"s_mov_b64 exec, s[{S_EX}:{S_EX+1}]")
L("L_skip")
L("L_end")

txt = "\n".join(hdr) + f"\n; @launch kernel={NAME} grid=(256,1,1) block=(512,1,1) lds=162816\n; @launch kernel=fin_kernel grid=(16,1,1) block=(256,1,1) lds=0\n"
txt += f""".amdgcn_target "amdgcn-amd-amdhsa--gfx950"
.text
.globl {NAME}
.p2align 8
.type {NAME},@function
{NAME}:
""" + "\n".join(out) + f"""
s_endpgm
.globl fin_kernel
.p2align 8
.type fin_kernel,@function
fin_kernel:
    s_cmp_ge_u32 s2, 16
    s_cbranch_scc1 L_fend
    s_load_dwordx2 s[4:5], s[0:1], 48
    s_load_dwordx2 s[6:7], s[0:1], 56
    s_load_dwordx2 s[8:9], s[0:1], 72
    s_lshl_b32 s3, s2, 8
    v_add_u32 v1, s3, v0
    v_lshrrev_b32 v2, 6, v1
    v_and_b32 v3, 63, v1
    v_lshlrev_b32 v2, 10, v2
    v_lshl_add_u32 v2, v3, 2, v2
    v_lshlrev_b32 v4, 2, v1
    v_lshlrev_b32 v5, 1, v1
    v_mov_b32 v6, 0
    s_waitcnt lgkmcnt(0)
    s_mov_b32 s12, s8
    s_and_b32 s13, s9, 0xffff
    s_mov_b32 s14, 81920
    s_mov_b32 s15, 0x00020000
    s_mov_b32 s16, s4
    s_and_b32 s17, s5, 0xffff
    s_mov_b32 s18, 2
    s_mov_b32 s19, 0x00020000
    s_mov_b32 s20, s6
    s_and_b32 s21, s7, 0xffff
    s_mov_b32 s22, 8192
    s_mov_b32 s23, 0x00020000
    s_mov_b32 s24, 65536
    buffer_load_dword v8, v2, s[12:15], 0 offen
    buffer_load_dword v9, v2, s[12:15], 0 offen offset:256
    buffer_load_dword v10, v2, s[12:15], 0 offen offset:512
    buffer_load_dword v11, v2, s[12:15], 0 offen offset:768
    buffer_load_dword v12, v4, s[12:15], s24 offen
    buffer_load_ushort v13, v6, s[16:19], 0 offen
    s_waitcnt vmcnt(0)
    v_lshlrev_b32 v13, 16, v13
    v_add_f32 v8, v8, v9
    v_add_f32 v10, v10, v11
    v_add_f32 v8, v8, v10
    v_add_f32 v8, v8, v13
    v_add_f32 v8, v8, v12
    v_cvt_pk_bf16_f32 v8, v8, v8
    buffer_store_short v8, v5, s[20:23], 0 offen
L_fend:
s_endpgm
.section .rodata,"a"
.p2align 6
.amdhsa_kernel fin_kernel
  .amdhsa_next_free_vgpr 16
  .amdhsa_next_free_sgpr 32
  .amdhsa_accum_offset 16
  .amdhsa_group_segment_fixed_size 0
  .amdhsa_kernarg_size 80
  .amdhsa_user_sgpr_count 2
  .amdhsa_user_sgpr_kernarg_segment_ptr 1
  .amdhsa_system_sgpr_workgroup_id_x 1
.end_amdhsa_kernel
.p2align 6
.amdhsa_kernel {NAME}
  .amdhsa_next_free_vgpr 256
  .amdhsa_next_free_sgpr 102
  .amdhsa_accum_offset 160
  .amdhsa_group_segment_fixed_size 0
  .amdhsa_kernarg_size 80
  .amdhsa_user_sgpr_count 2
  .amdhsa_user_sgpr_kernarg_segment_ptr 1
  .amdhsa_system_sgpr_workgroup_id_x 1
.end_amdhsa_kernel
"""
open(sys.argv[1] if len(sys.argv) > 1 else 'standalone__deep_cross_pnn__recsys.s', 'w').write(txt)
```

```python
import sys
out = []
def I(s): out.append("    " + s)
def L(s): out.append(s + ":")

HDR = open('standalone__deep_cross_pnn__recsys.s.ref').read().split('\n')
hdr = [l for l in HDR if l.startswith(';') and not l.startswith('; @launch')]
NAME = "standalone__deep_cross_pnn__recsys_kernel"

S_MT, S_NS, S_W = 3, 4, 5
P_IDX, P_TAB, P_WP, P_W1, P_B1, P_W2, P_B2, P_OUT, P_DBG, P_WS = 16,18,20,22,24,26,28,30,32,34
R_IDX, R_TAB, R_WP, R_W1, R_B1, R_W2, R_WS, R_DBG, R_OUT, R_B2 = 36,40,44,48,52,56,60,64,68,72
S_SELLO, S_SELHI = 76, 77
S_T0, S_T1, S_T2, S_T3 = 78, 79, 80, 81
S_C1, S_C2 = 82, 83
S_EX = 84
S_BOFF = 86
V_L, V_I, V_G, V_G16 = 1, 2, 3, 4
V_BADDR = 5
V_T = 6
V_D = 16
V_WQ = 32
V_BF = 32
V_BR = 64
V_IX = 16
V_M = 152
V_PA = 152
V_B1 = 156
V_W2 = 158
V_B2 = 18
A_ACC = 0
A_AF = 64
A_AD = 128
A_PI = 228
A_E = 0
A_W1R = 0

def srd(r, p, size):
    I(f"s_mov_b32 s{r}, s{p}")
    I(f"s_and_b32 s{r+1}, s{p+1}, 0xffff")
    I(f"s_mov_b32 s{r+2}, {size}")
    I(f"s_mov_b32 s{r+3}, 0x00020000")

pairs = [(t1,t2) for t1 in range(7) for t2 in range(t1,7)]
def wq(p, r): return V_WQ + p*4 + r

I("s_cmp_ge_u32 s2, 256")
I("s_cbranch_scc1 L_end")
I("s_load_dwordx16 s[16:31], s[0:1], 0")
I("s_load_dwordx4 s[32:35], s[0:1], 64")
I(f"s_lshr_b32 s{S_MT}, s2, 2")
I(f"s_and_b32 s{S_NS}, s2, 3")
I(f"v_lshrrev_b32 v{V_T}, 6, v0")
I(f"v_and_b32 v{V_L}, 63, v0")
I(f"v_readfirstlane_b32 s{S_W}, v{V_T}")
I(f"v_and_b32 v{V_I}, 15, v0")
I(f"v_bfe_u32 v{V_G}, v0, 4, 2")
I(f"v_lshlrev_b32 v{V_G16}, 4, v{V_G}")
I(f"s_mov_b32 s{S_SELLO}, 0x05040100")
I(f"s_mov_b32 s{S_SELHI}, 0x07060302")
I(f"s_mov_b32 s{S_C1}, 0xc0135761")
I(f"s_mov_b32 s{S_C2}, 0xbdd2d3e8")
I("s_waitcnt lgkmcnt(0)")
srd(R_IDX, P_IDX, 4096*400)
srd(R_TAB, P_TAB, 128000)
srd(R_WP, P_WP, 20000)
srd(R_W1, P_W1, 6400*512)
srd(R_B1, P_B1, 512)
srd(R_W2, P_W2, 512)
srd(R_B2, P_B2, 2)
srd(R_WS, P_WS, 4096*5*4)
srd(R_DBG, P_DBG, 256)
srd(R_OUT, P_OUT, 8192)

LDS_MT = 128000
LDS_PT = 128000 + 26624
S_FS, S_FC = 89, 90
I(f"s_lshr_b32 s{S_T0}, s{S_MT}, 1")
I(f"s_mul_i32 s{S_T0}, s{S_T0}, {200*512}")
I(f"s_lshl_b32 s{S_T1}, s{S_NS}, 7")
I(f"s_add_u32 s{S_T0}, s{S_T0}, s{S_T1}")
I(f"v_lshrrev_b32 v{V_T}, 3, v0")
I(f"v_and_b32 v{V_T+1}, 7, v0")
I(f"v_lshlrev_b32 v{V_T+1}, 4, v{V_T+1}")
I(f"v_lshl_or_b32 v{V_T}, v{V_T}, 9, v{V_T+1}")
for e in range(4):
    I(f"buffer_load_dwordx4 v[{100+4*e}:{103+4*e}], v{V_T}, s[{R_W1}:{R_W1+3}], s{S_T0} offen")
    I(f"s_add_u32 s{S_T0}, s{S_T0}, {64*512}")
I(f"v_lshlrev_b32 v{V_T+1}, 4, v{V_L}")
I(f"s_lshl_b32 s{S_T0}, s{S_W}, 10")
for e in range(3):
    I(f"s_add_u32 s{S_T1}, s{S_T0}, {LDS_MT}")
    I(f"s_mov_b32 m0, s{S_T1}")
    I("s_nop 0")
    I(f"buffer_load_dwordx4 v{V_T+1}, s[{R_WP}:{R_WP+3}], s{S_T0} offen lds")
    I(f"s_add_u32 s{S_T0}, s{S_T0}, 8192")
I(f"s_mul_i32 s{S_FS}, s{S_W}, 12")
I(f"s_mul_i32 s{S_T1}, s{S_W}, 13")
I(f"s_sub_u32 s{S_T1}, s{S_T1}, 4")
I(f"s_cmp_lt_u32 s{S_W}, 4")
I(f"s_cselect_b32 s{S_FS}, s{S_FS}, s{S_T1}")
I(f"s_cselect_b32 s{S_FC}, 12, 13")
I(f"s_mul_i32 s{S_T0}, s{S_MT}, 25600")
I(f"s_lshl_b32 s{S_T1}, s{S_FS}, 2")
I(f"s_add_u32 s{S_T0}, s{S_T0}, s{S_T1}")
I(f"v_mul_u32_u24 v{V_T}, 400, v{V_L}")
for e in range(3):
    r = V_IX + e*4
    I(f"buffer_load_dwordx4 v[{r}:{r+3}], v{V_T}, s[{R_IDX}:{R_IDX+3}], s{S_T0} offen offset:{e*16}")
I(f"buffer_load_dword v{V_IX+12}, v{V_T}, s[{R_IDX}:{R_IDX+3}], s{S_T0} offen offset:48")
I(f"s_lshl_b32 s{S_T0}, s{S_MT}, 6")
I(f"s_lshl_b32 s{S_T1}, s{S_NS}, 4")
I(f"s_add_u32 s{S_T0}, s{S_T0}, s{S_T1}")
I(f"s_lshl_b32 s{S_T1}, s{S_W}, 1")
I(f"s_add_u32 s{S_T0}, s{S_T0}, s{S_T1}")
I(f"s_mul_i32 s{S_T0}, s{S_T0}, 400")
I(f"v_lshlrev_b32 v{V_T+1}, 2, v{V_L}")
I(f"v_add_u32 v{V_T+2}, 64, v{V_L}")
I(f"v_min_u32 v{V_T+2}, 99, v{V_T+2}")
I(f"v_lshlrev_b32 v{V_T+2}, 2, v{V_T+2}")
for q in range(2):
    I(f"buffer_load_dword v{144+2*q}, v{V_T+1}, s[{R_IDX}:{R_IDX+3}], s{S_T0} offen offset:{q*400}")
    I(f"buffer_load_dword v{145+2*q}, v{V_T+2}, s[{R_IDX}:{R_IDX+3}], s{S_T0} offen offset:{q*400}")
I(f"s_and_b32 s{S_T1}, s{S_W}, 1")
I(f"s_lshl_b32 s{S_T1}, s{S_T1}, 2")
I(f"v_lshrrev_b32 v{V_T+3}, 4, v{V_L}")
I(f"v_add_u32 v{V_T+3}, s{S_T1}, v{V_T+3}")
I(f"v_and_b32 v{V_T+4}, 7, v{V_L}")
I(f"v_xor_b32 v{V_T+4}, v{V_T+4}, v{V_T+3}")
I(f"v_lshlrev_b32 v{V_T+4}, 4, v{V_T+4}")
I(f"v_lshrrev_b32 v{V_T+3}, 3, v{V_L}")
I(f"v_lshl_or_b32 v{V_T+4}, v{V_T+3}, 7, v{V_T+4}")
I(f"s_lshl_b32 s{S_T2}, s{S_W}, 10")
L("L_dma")
I(f"s_mov_b32 m0, s{S_T2}")
I(f"s_add_u32 s{S_T3}, s{S_T2}, 8192")
I(f"buffer_load_dwordx4 v{V_T+4}, s[{R_TAB}:{R_TAB+3}], s{S_T2} offen lds")
I(f"s_mov_b32 s{S_T2}, s{S_T3}")
I(f"s_cmp_lt_u32 s{S_T2}, 128000")
I("s_cbranch_scc1 L_dma")
I("s_waitcnt vmcnt(15)")
I("s_barrier")
I(f"v_mul_u32_u24 v{V_T+5}, 200, v{V_I}")
I(f"v_lshl_add_u32 v{V_T+5}, v{V_G}, 3, v{V_T+5}")
I(f"v_add_u32 v{V_T+5}, {LDS_MT}, v{V_T+5}")
I(f"v_mul_u32_u24 v{V_T+8}, 800, v{V_G}")
I(f"v_lshl_add_u32 v{V_T+8}, v{V_I}, 1, v{V_T+8}")
I(f"v_add_u32 v{V_T+8}, {LDS_MT}, v{V_T+8}")
for p,(t1,t2) in enumerate(pairs):
    I(f"ds_read_b64 a[{A_W1R+2*p}:{A_W1R+2*p+1}], v{V_T+5} offset:{t2*3200+t1*32}")
    if t1 < t2:
        for r in range(4):
            I(f"ds_read_u16 v{wq(p,r)}, v{V_T+8} offset:{t1*3200+r*200+t2*32}")
I(f"v_cmp_gt_u32 s[92:93], 4, v{V_I}")
I(f"v_cmp_gt_u32 s[94:95], 4, v{V_L}")
I("s_waitcnt lgkmcnt(0)")
I("s_barrier")
def base_calc(src):
    I(f"v_bfe_u32 v29, v{src}, 1, 3")
    I(f"v_lshlrev_b32 v{src}, 7, v{src}")
    I(f"v_lshl_or_b32 v{src}, v29, 4, v{src}")
I(f"s_mul_i32 s{S_T0}, s{S_W}, 3328")
I(f"s_add_u32 s{S_T0}, s{S_T0}, {LDS_MT}")
I(f"v_lshlrev_b32 v{V_T+3}, 4, v{V_I}")
I(f"v_lshl_add_u32 v{V_T+3}, v{V_G}, 2, v{V_T+3}")
I(f"v_add_u32 v{V_T+3}, s{S_T0}, v{V_T+3}")
for f in range(13):
    base_calc(V_IX+f)
    I(f"ds_write_b32 v{V_T+3}, v{V_IX+f} offset:{f*256}")
I(f"s_lshl_b32 s{S_T0}, s{S_W}, 10")
I(f"s_add_u32 s{S_T0}, s{S_T0}, {LDS_PT}")
I(f"v_lshlrev_b32 v{V_T+3}, 5, v{V_I}")
I(f"v_lshl_add_u32 v{V_T+3}, v{V_G}, 2, v{V_T+3}")
I(f"v_add_u32 v{V_T+3}, s{S_T0}, v{V_T+3}")
for q in range(2):
    base_calc(144+2*q); base_calc(145+2*q)
    I(f"ds_write_b32 v{V_T+3}, v{144+2*q} offset:{q*512}")
    I(f"ds_write_b32 v{V_T+3}, v{145+2*q} offset:{q*512+16}")
I("s_waitcnt lgkmcnt(0)")
I(f"s_lshl_b32 s{S_T1}, s{S_NS}, 7")
I(f"v_and_b32 v13, 3, v{V_I}")
I(f"v_lshrrev_b32 v14, 3, v{V_I}")
I(f"v_lshl_add_u32 v13, v14, 2, v13")
I(f"v_bfe_u32 v14, v{V_I}, 2, 1")
I(f"v_lshlrev_b32 v{V_T+5}, 4, v13")
I(f"v_lshl_add_u32 v{V_T+5}, v14, 3, v{V_T+5}")
I(f"buffer_load_dwordx2 v[{V_B1}:{V_B1+1}], v{V_T+5}, s[{R_B1}:{R_B1+3}], s{S_T1} offen")
I(f"buffer_load_dwordx2 v[{V_W2}:{V_W2+1}], v{V_T+5}, s[{R_W2}:{R_W2+3}], s{S_T1} offen")

I(f"v_lshlrev_b32 v{V_BADDR}, 12, v{V_G}")
I(f"v_lshl_add_u32 v{V_BADDR}, v13, 4, v{V_BADDR}")
I(f"v_lshl_add_u32 v{V_BADDR}, v14, 11, v{V_BADDR}")
I(f"s_lshl_b32 s{S_T1}, s{S_NS}, 7")
I(f"v_add_u32 v{V_BADDR}, s{S_T1}, v{V_BADDR}")
I(f"s_lshl_b32 s{S_BOFF}, s{S_FS}, 15")
def bload(f):
    rb = f % 2
    for s in range(2):
        I(f"s_add_u32 s{S_T3}, s{S_BOFF}, {f*32768 + s*16384}")
        for r in range(4):
            d = V_BR + rb*32 + (s*4+r)*4
            I(f"buffer_load_dwordx4 v[{d}:{d+3}], v{V_BADDR}, s[{R_W1}:{R_W1+3}], s{S_T3} offen offset:{r*512}")
for p,(t1,t2) in enumerate(pairs):
    a0, a1 = V_T+10, V_T+11
    I(f"v_accvgpr_read_b32 v{a0}, a{A_W1R+2*p}")
    I(f"v_accvgpr_read_b32 v{a1}, a{A_W1R+2*p+1}")
    if t1 < t2:
        for r in range(4):
            I(f"v_lshlrev_b32 v{wq(p,r)}, 16, v{wq(p,r)}")
        I(f"v_lshlrev_b32 v{V_T+12}, 16, v{a0}")
        I(f"v_and_b32 v{V_T+13}, 0xffff0000, v{a0}")
        I(f"v_lshlrev_b32 v{V_T+14}, 16, v{a1}")
        I(f"v_and_b32 v{V_T+15}, 0xffff0000, v{a1}")
        for r in range(4):
            I(f"v_add_f32 v{wq(p,r)}, v{wq(p,r)}, v{V_T+12+r}")
    else:
        I(f"v_lshlrev_b32 v{wq(p,0)}, 16, v{a0}")
        I(f"v_and_b32 v{wq(p,1)}, 0xffff0000, v{a0}")
        I(f"v_lshlrev_b32 v{wq(p,2)}, 16, v{a1}")
        I(f"v_and_b32 v{wq(p,3)}, 0xffff0000, v{a1}")
    if t2 == 6:
        m = "s[92:93]" if t1 < 6 else "s[94:95]"
        for r in range(4): I(f"v_cndmask_b32 v{wq(p,r)}, 0, v{wq(p,r)}, {m}")

I("s_waitcnt vmcnt(0) lgkmcnt(0)")
I("s_barrier")
V_G16B = 15
I(f"v_xor_b32 v{V_G16B}, 64, v{V_G16}")
def efrag(t, s): return A_E + (t*2+s)*4
PQ = 144
S_Q = 87
I(f"s_lshl_b32 s{S_T0}, s{S_W}, 10")
I(f"s_add_u32 s{S_T0}, s{S_T0}, {LDS_PT}")
I(f"v_lshlrev_b32 v{V_T+3}, 5, v{V_I}")
I(f"v_add_u32 v{V_T+3}, s{S_T0}, v{V_T+3}")
I(f"s_lshl_b32 s{S_T0}, s{S_MT}, 6")
I(f"s_lshl_b32 s{S_T1}, s{S_NS}, 4")
I(f"s_add_u32 s{S_T0}, s{S_T0}, s{S_T1}")
I(f"s_lshl_b32 s{S_T1}, s{S_W}, 1")
I(f"s_add_u32 s{S_T0}, s{S_T0}, s{S_T1}")
I(f"s_lshl_b32 s{S_T0}, s{S_T0}, 2")
I(f"s_add_u32 s{S_T2}, s{S_T0}, {4096*4*4}")
I(f"v_mov_b32 v{V_T+4}, 0")
I(f"s_mov_b32 s{S_Q}, 0")
L("L_pnn")
I(f"ds_read_b128 v[{PQ}:{PQ+3}], v{V_T+3}")
I(f"ds_read_b128 v[{PQ+4}:{PQ+7}], v{V_T+3} offset:16")
for r in range(4): I(f"v_mov_b32 v{V_PA+r}, 0")
I(f"v_add_u32 v{V_T+3}, 512, v{V_T+3}")
I("s_waitcnt lgkmcnt(0)")
for t in range(7):
    I(f"v_xor_b32 v{V_T+5}, v{PQ+t}, v{V_G16}")
    I(f"v_xor_b32 v{V_T+6}, v{PQ+t}, v{V_G16B}")
    e0 = efrag(t,0); e1 = efrag(t,1)
    I(f"ds_read_b128 a[{e0}:{e0+3}], v{V_T+5}")
    I(f"ds_read_b128 a[{e1}:{e1+3}], v{V_T+6}")
I("s_waitcnt lgkmcnt(0)")
LAG = 3
for p in range(28 + LAG):
    if p < 28:
        t1,t2 = pairs[p]; d = V_D + (p%4)*4
        a0,b0 = efrag(t1,0), efrag(t2,0); a1,b1 = efrag(t1,1), efrag(t2,1)
        I(f"v_mfma_f32_16x16x32_bf16 v[{d}:{d+3}], a[{a0}:{a0+3}], a[{b0}:{b0+3}], 0")
        I(f"v_mfma_f32_16x16x32_bf16 v[{d}:{d+3}], a[{a1}:{a1+3}], a[{b1}:{b1+3}], v[{d}:{d+3}]")
    else:
        I("s_nop 3")
    pp = p - LAG
    if pp >= 0:
        d = V_D + (pp%4)*4
        for r in range(4):
            I(f"v_fmac_f32 v{V_PA+r}, v{d+r}, v{wq(pp,r)}")
def dpp_add(v, mod):
    I("s_nop 1")
    I(f"v_add_f32_dpp v{v}, v{v}, v{v} {mod}")
I(f"v_add_f32 v{V_PA}, v{V_PA}, v{V_PA+1}")
I(f"v_add_f32 v{V_PA+2}, v{V_PA+2}, v{V_PA+3}")
I(f"v_add_f32 v{V_PA}, v{V_PA}, v{V_PA+2}")
for sh in (1,2,4,8): dpp_add(V_PA, f"row_shr:{sh} row_mask:0xf bank_mask:0xf bound_ctrl:0")
dpp_add(V_PA, "row_bcast:15 row_mask:0xa bank_mask:0xf")
dpp_add(V_PA, "row_bcast:31 row_mask:0xc bank_mask:0xf")
I(f"s_mov_b32 exec_lo, 0")
I(f"s_mov_b32 exec_hi, 0x80000000")
I(f"buffer_store_dword v{V_PA}, v{V_T+4}, s[{R_WS}:{R_WS+3}], s{S_T2} offen")
I(f"s_mov_b64 exec, -1")
I(f"s_add_u32 s{S_T2}, s{S_T2}, 4")
I(f"s_add_u32 s{S_Q}, s{S_Q}, 1")
I(f"s_cmp_lt_u32 s{S_Q}, 2")
I("s_cbranch_scc1 L_pnn")

def af(f, t, s): return A_AF + (t*2+s)*4
def bf(f, s, j): return V_BF + (s*4+j)*4
def acc(t, j): return A_ACC + (t*4+j)*4
V_MT = V_T+3
def aq(f): return PQ + (f%2)*4
def a_reads(f):
    r = []
    for t in range(4):
        ta = V_D + t*2
        r.append(f"v_xor_b32 v{ta}, v{aq(f)+t}, v{V_G16}")
        r.append(f"v_xor_b32 v{ta+1}, v{aq(f)+t}, v{V_G16B}")
        e0 = af(f,t,0); e1 = af(f,t,1)
        r.append(f"ds_read_b128 a[{e0}:{e0+3}], v{ta}")
        r.append(f"ds_read_b128 a[{e1}:{e1+3}], v{ta+1}")
    return r
V_Y = 128
def perms(f):
    r = []
    rb = f % 2
    for s in range(2):
        for c in range(8):
            for m in range(2):
                lo = V_BR + rb*32 + (s*4+2*m)*4 + (c>>1)
                hi = V_BR + rb*32 + (s*4+2*m+1)*4 + (c>>1)
                sel = S_SELLO if (c&1)==0 else S_SELHI
                dst = bf(f,s,c)+m if c < 4 else V_Y + (c-4)*2 + m
                r.append(f"v_perm_b32 v{dst}, v{hi}, v{lo}, s{sel}")
        for j in range(4):
            for m in range(2):
                r.append(f"v_mov_b32_dpp v{bf(f,s,j)+2+m}, v{bf(f,s,j)+m} row_shl:4 row_mask:0xf bank_mask:0x5")
        for j in range(4):
            for m in range(2):
                r.append(f"v_mov_b32_dpp v{bf(f,s,j)+2+m}, v{V_Y+j*2+m} quad_perm:[0,1,2,3] row_mask:0xf bank_mask:0xa")
        for j in range(4):
            for m in range(2):
                r.append(f"v_mov_b32_dpp v{bf(f,s,j)+m}, v{V_Y+j*2+m} row_shr:4 row_mask:0xf bank_mask:0xa")
    return r
S_BL = 88
def bload_list(f, rel):
    r = []
    rb = f % 2
    for s in range(2):
        r.append(f"s_add_u32 s{S_T3}, s{S_BL}, {rel*32768 + s*16384}")
        for rr in range(4):
            d = V_BR + rb*32 + (s*4+rr)*4
            r.append(f"buffer_load_dwordx4 v[{d}:{d+3}], v{V_BADDR}, s[{R_W1}:{R_W1+3}], s{S_T3} offen offset:{rr*512}")
    return r
def mfmas(f):
    mf = []
    for s in range(2):
        for t in range(4):
            for j in range(4):
                a = af(f,t,s); b = bf(f,s,j); c = acc(t,j)
                mf.append(f"v_mfma_f32_16x16x32_bf16 a[{c}:{c+3}], a[{a}:{a+3}], v[{b}:{b+3}], a[{c}:{c+3}]")
    return mf
I(f"s_mul_i32 s{S_T0}, s{S_W}, 3328")
I(f"s_add_u32 s{S_T0}, s{S_T0}, {LDS_MT}")
I(f"v_lshlrev_b32 v{V_MT}, 4, v{V_I}")
I(f"v_add_u32 v{V_MT}, s{S_T0}, v{V_MT}")
I(f"ds_read_b128 v[{aq(0)}:{aq(0)+3}], v{V_MT}")
I(f"s_mov_b32 s{S_BL}, s{S_BOFF}")
for x in bload_list(0, 0): I(x)
for x in bload_list(1, 1): I(x)
I(f"s_add_u32 s{S_BL}, s{S_BL}, 65536")
for k in range(64): I(f"v_accvgpr_write_b32 a{A_ACC+k}, 0")
I(f"s_mov_b32 s{S_Q}, 0")
def body(f):
    I("s_waitcnt lgkmcnt(0)")
    for x in a_reads(f): I(x)
    I(f"ds_read_b128 v[{aq(f+1)}:{aq(f+1)+3}], v{V_MT} offset:256")
    I(f"v_add_u32 v{V_MT}, 256, v{V_MT}")
    I(f"s_add_u32 s{S_T0}, s{S_Q}, 2")
    I(f"s_cmp_ge_u32 s{S_T0}, s{S_FC}")
    I(f"s_cselect_b32 s{S_BL}, 0x40000000, s{S_BL}")
    I("s_waitcnt vmcnt(8)")
    for x in perms(f): I(x)
    for x in bload_list(f, 0): I(x)
    I(f"s_add_u32 s{S_BL}, s{S_BL}, 32768")
    I("s_waitcnt lgkmcnt(1)")
    for m in mfmas(f): I(m)
    I(f"s_add_u32 s{S_Q}, s{S_Q}, 1")
    I(f"s_cmp_ge_u32 s{S_Q}, s{S_FC}")
L("L_mlp")
body(0)
I("s_cbranch_scc1 L_mlpd")
body(1)
I("s_cbranch_scc0 L_mlp")
L("L_mlpd")

I("s_nop 7"); I("s_nop 7")
I("s_barrier")
I(f"v_lshlrev_b32 v{V_T}, 4, v{V_L}")
I(f"s_lshl_b32 s{S_T0}, s{S_W}, 14")
I(f"v_add_u32 v{V_T+1}, s{S_T0}, v{V_T}")
for t in range(4):
    for j in range(4):
        c = acc(t,j)
        I(f"ds_write_b128 v{V_T+1}, a[{c}:{c+3}] offset:{(t*4+j)*1024}")
I("s_waitcnt lgkmcnt(0)")
I("s_barrier")
I(f"s_cmp_ge_u32 s{S_W}, 4")
I("s_cbranch_scc1 L_skip")
I(f"s_lshl_b32 s{S_T0}, s{S_W}, 12")
I(f"v_add_u32 v{V_T+1}, s{S_T0}, v{V_T}")
I(f"v_add_u32 v{V_T+3}, 0x10000, v{V_T+1}")
VZ = 32
for wp in range(4):
    for j in range(4):
        d = VZ + (wp*4+j)*4
        I(f"ds_read_b128 v[{d}:{d+3}], v{V_T+1} offset:{wp*16384+j*1024}")
for rnd in range(2):
    for wp in range(2):
        for j in range(4):
            d = 96 + (wp*4+j)*4
            I(f"ds_read_b128 v[{d}:{d+3}], v{V_T+3} offset:{(rnd*2+wp)*16384+j*1024}")
    I("s_waitcnt lgkmcnt(0)")
    for k in range(32): I(f"v_add_f32 v{VZ+rnd*32+k}, v{VZ+rnd*32+k}, v{96+k}")
VB, VW = 96, 100
I(f"v_lshlrev_b32 v{VB}, 16, v{V_B1}")
I(f"v_and_b32 v{VB+1}, 0xffff0000, v{V_B1}")
I(f"v_lshlrev_b32 v{VB+2}, 16, v{V_B1+1}")
I(f"v_and_b32 v{VB+3}, 0xffff0000, v{V_B1+1}")
I(f"v_lshlrev_b32 v{VW}, 16, v{V_W2}")
I(f"v_and_b32 v{VW+1}, 0xffff0000, v{V_W2}")
I(f"v_lshlrev_b32 v{VW+2}, 16, v{V_W2+1}")
I(f"v_and_b32 v{VW+3}, 0xffff0000, v{V_W2+1}")
I(f"v_mov_b32 v{V_T+2}, s{S_C1}")
I("s_waitcnt lgkmcnt(0)")
VP = 104
VT2 = 108
for j in range(4):
    for r in range(4):
        z = VZ + j*4 + r
        I(f"v_add_f32 v{z}, v{z}, v{VZ+(4+j)*4+r}")
        I(f"v_add_f32 v{VT2+r}, v{VZ+(8+j)*4+r}, v{VZ+(12+j)*4+r}")
        I(f"v_add_f32 v{z}, v{z}, v{VB+j}")
        I(f"v_add_f32 v{z}, v{z}, v{VT2+r}")
    for r in range(4):
        z = VZ + j*4 + r
        I(f"v_mul_f32 v{VT2+r}, v{z}, v{z}")
        I(f"v_fma_f32 v{VT2+r}, v{VT2+r}, s{S_C2}, v{V_T+2}")
        I(f"v_mul_f32 v{VT2+r}, v{VT2+r}, v{z}")
    for r in range(4): I(f"v_exp_f32 v{VT2+r}, v{VT2+r}")
    for r in range(4): I(f"v_add_f32 v{VT2+r}, 1.0, v{VT2+r}")
    for r in range(4): I(f"v_rcp_f32 v{VT2+r}, v{VT2+r}")
    for r in range(4):
        z = VZ + j*4 + r
        I(f"v_mul_f32 v{z}, v{z}, v{VT2+r}")
    for r in range(4):
        z = VZ + j*4 + r
        if j == 0: I(f"v_mul_f32 v{VP+r}, v{z}, v{VW+j}")
        else: I(f"v_fmac_f32 v{VP+r}, v{z}, v{VW+j}")
for sh in (1,2,4,8):
    for r in range(4): dpp_add(VP+r, f"row_shr:{sh} row_mask:0xf bank_mask:0xf bound_ctrl:0")
I(f"s_lshl_b32 s{S_T0}, s2, 8")
I(f"s_lshl_b32 s{S_T1}, s{S_W}, 6")
I(f"s_add_u32 s{S_T0}, s{S_T0}, s{S_T1}")
I(f"v_lshlrev_b32 v{V_T+3}, 4, v{V_G}")
I(f"s_mov_b64 s[{S_EX}:{S_EX+1}], exec")
I(f"s_mov_b32 exec_lo, 0x80008000")
I(f"s_mov_b32 exec_hi, 0x80008000")
I(f"buffer_store_dwordx4 v[{VP}:{VP+3}], v{V_T+3}, s[{R_WS}:{R_WS+3}], s{S_T0} offen")
I(f"s_mov_b64 exec, s[{S_EX}:{S_EX+1}]")
L("L_skip")
L("L_end")

txt = "\n".join(hdr) + f"\n; @launch kernel={NAME} grid=(256,1,1) block=(512,1,1) lds=162816\n; @launch kernel=fin_kernel grid=(16,1,1) block=(256,1,1) lds=0\n"
txt += f""".amdgcn_target "amdgcn-amd-amdhsa--gfx950"
.text
.globl {NAME}
.p2align 8
.type {NAME},@function
{NAME}:
""" + "\n".join(out) + f"""
s_endpgm
.globl fin_kernel
.p2align 8
.type fin_kernel,@function
fin_kernel:
    s_cmp_ge_u32 s2, 16
    s_cbranch_scc1 L_fend
    s_load_dwordx2 s[4:5], s[0:1], 48
    s_load_dwordx2 s[6:7], s[0:1], 56
    s_load_dwordx2 s[8:9], s[0:1], 72
    s_lshl_b32 s3, s2, 8
    v_add_u32 v1, s3, v0
    v_lshrrev_b32 v2, 6, v1
    v_and_b32 v3, 63, v1
    v_lshlrev_b32 v2, 10, v2
    v_lshl_add_u32 v2, v3, 2, v2
    v_lshlrev_b32 v4, 2, v1
    v_lshlrev_b32 v5, 1, v1
    v_mov_b32 v6, 0
    s_waitcnt lgkmcnt(0)
    s_mov_b32 s12, s8
    s_and_b32 s13, s9, 0xffff
    s_mov_b32 s14, 81920
    s_mov_b32 s15, 0x00020000
    s_mov_b32 s16, s4
    s_and_b32 s17, s5, 0xffff
    s_mov_b32 s18, 2
    s_mov_b32 s19, 0x00020000
    s_mov_b32 s20, s6
    s_and_b32 s21, s7, 0xffff
    s_mov_b32 s22, 8192
    s_mov_b32 s23, 0x00020000
    s_mov_b32 s24, 65536
    buffer_load_dword v8, v2, s[12:15], 0 offen
    buffer_load_dword v9, v2, s[12:15], 0 offen offset:256
    buffer_load_dword v10, v2, s[12:15], 0 offen offset:512
    buffer_load_dword v11, v2, s[12:15], 0 offen offset:768
    buffer_load_dword v12, v4, s[12:15], s24 offen
    buffer_load_ushort v13, v6, s[16:19], 0 offen
    s_waitcnt vmcnt(0)
    v_lshlrev_b32 v13, 16, v13
    v_add_f32 v8, v8, v9
    v_add_f32 v10, v10, v11
    v_add_f32 v8, v8, v10
    v_add_f32 v8, v8, v13
    v_add_f32 v8, v8, v12
    v_cvt_pk_bf16_f32 v8, v8, v8
    buffer_store_short v8, v5, s[20:23], 0 offen
L_fend:
s_endpgm
.section .rodata,"a"
.p2align 6
.amdhsa_kernel fin_kernel
  .amdhsa_next_free_vgpr 16
  .amdhsa_next_free_sgpr 32
  .amdhsa_accum_offset 16
  .amdhsa_group_segment_fixed_size 0
  .amdhsa_kernarg_size 80
  .amdhsa_user_sgpr_count 2
  .amdhsa_user_sgpr_kernarg_segment_ptr 1
  .amdhsa_system_sgpr_workgroup_id_x 1
.end_amdhsa_kernel
.p2align 6
.amdhsa_kernel {NAME}
  .amdhsa_next_free_vgpr 256
  .amdhsa_next_free_sgpr 102
  .amdhsa_accum_offset 160
  .amdhsa_group_segment_fixed_size 0
  .amdhsa_kernarg_size 80
  .amdhsa_user_sgpr_count 2
  .amdhsa_user_sgpr_kernarg_segment_ptr 1
  .amdhsa_system_sgpr_workgroup_id_x 1
.end_amdhsa_kernel
"""
open(sys.argv[1] if len(sys.argv) > 1 else 'standalone__deep_cross_pnn__recsys.s', 'w').write(txt)
```
